```python
import torch

def _softmax(x, axis=-1):
    return torch.softmax(x, dim=axis)
def _gelu(x):
    return torch.nn.functional.gelu(x, approximate="tanh")
def _silu(x):
    return torch.nn.functional.silu(x)
def _sigmoid(x):
    return torch.sigmoid(x)
def _layernorm(x, axis=-1, eps=1e-5):
    m = x.mean(dim=axis, keepdim=True)
    v = x.var(dim=axis, keepdim=True, unbiased=False)
    return (x - m) / torch.sqrt(v + eps)
def _scatter_add(tgt, idx, src, axis=0):
    return tgt.clone().index_add_(axis, idx, src)
def _segment_sum(src, seg, n):
    out = torch.zeros((n,) + src.shape[1:], dtype=src.dtype)
    return out.index_add_(0, seg, src)
def _pad(x, pw):
    flat = tuple(v for pair in reversed(pw) for v in pair)
    return torch.nn.functional.pad(x, flat)

kernel_name = 'gated_mix__sliding_block__dense_activation_silu__prompt'

def setup_inputs():

    _w = (lambda a: (lambda t: t.to(torch.bfloat16) if t.is_floating_point() else t)(torch.as_tensor(a)))
    def _A_setup():
        B, S, D = 1, 2048, 512
        return {
            "x": _w((lambda *s: torch.randn(*s, dtype=torch.bfloat16) * 0.2)(B, S, D)),
            "wqkv": _w((lambda *s: torch.randn(*s, dtype=torch.bfloat16) * 0.2)(D, 3 * D)),
            "wo": _w((lambda *s: torch.randn(*s, dtype=torch.bfloat16) * 0.2)(D, D)),
        }
    _A_in = _A_setup()

    def _B_setup():
        B, S, D, F = 1, 2048, 512, 1376
        return {
            "x": _w((lambda *s: torch.randn(*s, dtype=torch.bfloat16) * 0.2)(B, S, D)),
            "w1": _w((lambda *s: torch.randn(*s, dtype=torch.bfloat16) * 3.2)(D, F) * (D ** -0.5)),
            "w2": _w((lambda *s: torch.randn(*s, dtype=torch.bfloat16) * 3.2)(F, D) * (F ** -0.5)),
        }
    _B_in = _B_setup()

    return {
        "A_x": _A_in["x"],
        "A_wqkv": _A_in["wqkv"],
        "A_wo": _A_in["wo"],
        "B_x": _B_in["x"],
        "B_w1": _B_in["w1"],
        "B_w2": _B_in["w2"],
        "gate_w": _w((lambda *s: torch.randn(*s, dtype=torch.bfloat16) * 0.2)(512) * 16.0),
    }

def reference(A_x, A_wqkv, A_wo, B_x, B_w1, B_w2, gate_w):
    def _A_ref(x, wqkv, wo):
        B, S, D = x.shape
        H = 32; Dh = D // H; W = 256
        qkv = (lambda x, *d: x.permute(*d))((x @ wqkv).reshape(B, S, 3, H, Dh), 2, 0, 3, 1, 4)
        q, k, v = qkv[0], qkv[1], qkv[2]
        scores = torch.einsum("bhqd,bhkd->bhqk", q, k) * (Dh ** -0.5)
        idx = torch.arange(S)
        mask = (idx[:, None] - idx[None, :] >= 0) & (idx[:, None] - idx[None, :] < W)
        scores = torch.where(mask[None, None], scores, -1e9)
        p = _softmax(scores, axis=-1)
        o = torch.einsum("bhqk,bhkd->bhqd", p, v)
        return (lambda x, *d: x.permute(*d))(o, 0, 2, 1, 3).reshape(B, S, D) @ wo

    def _B_ref(x, w1, w2):
        h = torch.einsum("bsd,df->bsf", x, w1)
        h = _silu(h)
        out = torch.einsum("bsf,fd->bsd", h, w2)
        return out

    x = A_x
    g = _sigmoid((x * gate_w).sum(-1, keepdims=True))
    a = _A_ref(x, A_wqkv, A_wo)
    b = _B_ref(x, B_w1, B_w2)
    return g * a + (1 - g) * b
```

```python
import re

TRANS = ("v_exp_", "v_log_", "v_rcp_", "v_rsq_", "v_sqrt_", "v_sin_", "v_cos_")
SCC_DEF = ("s_add_", "s_sub_", "s_addc_", "s_subb_", "s_and_", "s_or_", "s_xor_", "s_andn2_", "s_orn2_",
           "s_lshl_", "s_lshr_", "s_ashr_", "s_min_", "s_max_", "s_not_", "s_bfe_", "s_cmp", "s_bitcmp",
           "s_addk_", "s_abs_", "s_lshl1_", "s_lshl2_", "s_lshl3_", "s_lshl4_")
SCC_USE = ("s_addc_", "s_subb_", "s_cselect_", "s_cbranch_scc")

_tok = re.compile(r"^-?(?:abs\()?([vas])(?:\[(\d+):(\d+)\]|(\d+))\)?$")


def regs_of(tok):
    tok = tok.strip()
    if tok in ("vcc", "vcc_lo", "vcc_hi"):
        return [("x", "vcc")]
    if tok in ("exec", "exec_lo", "exec_hi"):
        return [("x", "exec")]
    if tok == "m0":
        return [("x", "m0")]
    m = _tok.match(tok)
    if not m:
        return []
    k = m.group(1)
    if m.group(4) is not None:
        return [(k, int(m.group(4)))]
    return [(k, n) for n in range(int(m.group(2)), int(m.group(3)) + 1)]


class Ins:
    __slots__ = ("text", "op", "ops", "defs", "uses", "cls", "ws", "meta", "srcC", "srcAB", "dpp", "done")

    def __init__(self, text, **meta):
        self.text = text
        self.meta = meta
        self.done = 0
        body = text.split(";")[0].strip()
        self.dpp = False
        self.srcC = set()
        self.srcAB = set()
        self.ws = 1
        if body.endswith(":") or body.startswith("."):
            self.op = "label"; self.ops = []; self.defs = set(); self.uses = set(); self.cls = "label"; self.ws = 0
            return
        parts = body.split(None, 1)
        op = parts[0]
        self.op = op
        rest = parts[1] if len(parts) > 1 else ""
        ops = [o.strip() for o in rest.split(",")] if rest else []
        mods = ""
        if ops:
            sp = ops[-1].split(None, 1)
            ops[-1] = sp[0]
            mods = sp[1] if len(sp) > 1 else ""
        self.ops = ops
        R = [regs_of(o) for o in ops]
        allr = lambda L: set(x for r in L for x in r)
        d, u = set(), set()
        if op.startswith("v_mfma"):
            cls = "mfma"; d = allr(R[:1]); u = allr(R[1:]); self.srcC = allr(R[3:4]); self.srcAB = allr(R[1:3])
        elif op.startswith("v_"):
            cls = "valu"
            if op.startswith(TRANS): cls = "trans"
            if op.startswith("v_dot"): cls = "dot"
            if op.startswith("v_permlane"):
                d = allr(R); u = allr(R)
            elif op.startswith(("v_fmac", "v_dot2c", "v_writelane")):
                d = allr(R[:1]); u = allr(R)
            elif op.startswith("v_nop"):
                pass
            else:
                d = allr(R[:1]); u = allr(R[1:])
            if "row_" in mods or "quad_perm" in mods or "_dpp" in op:
                self.dpp = True; u |= d
            if op.startswith("v_dot"):
                self.srcC = allr(R[3:4]) if len(R) > 3 else allr(R[:1])
                self.srcAB = allr(R[1:3])
        elif op.startswith("ds_read"):
            cls = "dsr"; d = allr(R[:1]); u = allr(R[1:])
        elif op.startswith("ds_write"):
            cls = "dsw"; u = allr(R)
        elif op.startswith(("buffer_load", "global_load")):
            if re.search(r"\blds\b", mods):
                cls = "dma"; u = allr(R) | {("x", "m0")}
            else:
                cls = "vld"; d = allr(R[:1]); u = allr(R[1:])
        elif op.startswith(("buffer_store", "global_store")):
            cls = "vst"; u = allr(R)
        elif op.startswith(("s_load", "s_memtime", "s_memrealtime")):
            cls = "smem"; d = allr(R[:1]); u = allr(R[1:])
        elif op == "s_waitcnt":
            cls = "wait"
        elif op == "s_barrier":
            cls = "barrier"
        elif op == "s_nop":
            cls = "nop"; self.ws = int(ops[0], 0) + 1
        elif op.startswith(("s_branch", "s_cbranch", "s_endpgm", "s_setprio", "s_sleep")):
            cls = "ctl"
            if "vcc" in op: u.add(("x", "vcc"))
            if "exec" in op: u.add(("x", "exec"))
        elif op.startswith("s_"):
            cls = "salu"
            if op.startswith(("s_cmp", "s_bitcmp")):
                u = allr(R)
            else:
                d = allr(R[:1]); u = allr(R[1:])
                if op.startswith(("s_addk", "s_mulk")): u |= d
        else:
            raise ValueError("unknown op " + text)
        if op.startswith(SCC_DEF): d.add(("x", "scc"))
        if op.startswith(SCC_USE): u.add(("x", "scc"))
        self.cls = cls; self.defs = d; self.uses = u


VALU = ("valu", "trans", "dot")
VMEM = ("dma", "vld", "vst")


def is_s(r): return r[0] == "s" or r == ("x", "vcc")
def is_v(r): return r[0] in ("v", "a")


def hazard(p, c):
    n = 0
    pv = p.cls in VALU
    cv = c.cls in VALU
    if pv:
        vd = {r for r in p.defs if is_v(r)}
        sd = {r for r in p.defs if is_s(r)}
        if vd:
            if c.cls == "mfma" and vd & c.uses: n = max(n, 2)
            if p.cls == "trans" and (vd & c.uses) and c.cls != "trans": n = max(n, 1)
            if p.cls == "trans" and (vd & c.uses) and c.cls == "trans": n = max(n, 1)
            if c.op.startswith(("v_readfirstlane", "v_readlane")) and vd & c.uses: n = max(n, 1)
            if cv and c.dpp and vd & c.uses: n = max(n, 2)
            if c.op.startswith("v_permlane") and vd & c.uses: n = max(n, 2)
            if p.cls == "dot":
                if c.op == p.op:
                    if vd & c.srcAB: n = max(n, 3)
                elif vd & (c.uses | c.defs): n = max(n, 3)
        if sd:
            if cv and sd & c.uses: n = max(n, 4 if c.op.startswith(("v_readlane", "v_writelane")) else 2)
            if c.cls in VMEM + ("smem",) and sd & c.uses: n = max(n, 5)
            if c.cls in ("salu", "ctl") and sd & c.uses: n = max(n, 1)
        if ("x", "exec") in p.defs: n = max(n, 5)
    if p.cls == "mfma":
        D = p.defs
        if c.cls == "mfma":
            if D & c.srcAB: n = max(n, 12)
            if D & c.srcC and D != c.srcC: n = max(n, 10)
        elif cv:
            if D & (c.uses | c.defs): n = max(n, 12)
            if p.srcC & c.defs: n = max(n, 7)
        elif c.cls in VMEM + ("dsr", "dsw"):
            if D & (c.uses | c.defs): n = max(n, 12)
            if p.srcC & c.defs: n = max(n, 7)
    if p.cls == "salu" and ("x", "m0") in p.defs and c.cls == "dma": n = max(n, 1)
    if p.cls in ("vst", "dsw") and c.defs:
        data = set(regs_of(p.ops[0])) if p.cls == "vst" else set(regs_of(p.ops[1]))
        if len(data) >= 3 and data & c.defs: n = max(n, 2)
    return n


class Region:
    def __init__(self, name, lo, size, private=False):
        self.name = name; self.lo = lo; self.hi = lo + size; self.private = private
        self.writes = []
        self.reads = []
        self.nwrites_expected = None
        self.nreads_expected = None

    def overlaps(self, o): return self.lo < o.hi and o.lo < self.hi


class Prog:
    def __init__(self, lat=600, t0=0):
        self.out = []
        self.vmq = []
        self.lgq = []
        self.smem = []
        self.t = t0
        self.mfma_free = 0
        self.pipe_free = 0
        self.lat = lat
        self.regions = []
        self.nbar = 0
        self.m0 = None
        self.sval = {}
        self.marks = {}
        self.errors = []
        self.log = []
        self.prev_cls = None

    def _append(self, ins):
        self.out.append(ins)
        c = ins.cls
        if c == "label":
            return
        dt = 4
        if c == "nop": dt = 4 * ins.ws
        elif c == "trans": dt = 8
        elif c == "mfma":
            st = max(self.t, self.mfma_free); self.mfma_free = st + 32; self.t = st; dt = 8
        elif c in ("dsr", "dsw"):
            dt = 4 if self.prev_cls in ("mfma", "dsr") else 8
            if c == "dsw": dt = 16
            ins.done = self.t + 90
        elif c in VMEM:
            dt = 10
            lines = ins.meta.get("lines", 8)
            st = max(self.t + 20, self.pipe_free)
            self.pipe_free = st + lines * 4 * 2.1
            ins.done = self.pipe_free + ins.meta.get("lat", self.lat)
            if self.vmq: ins.done = max(ins.done, self.vmq[-1].done)
        elif c == "smem":
            ins.done = self.t + ins.meta.get("lat", 200)
        elif c == "barrier":
            dt = 24
        self.t += dt
        self.prev_cls = c

    def _retire(self, ins):
        ins.meta["complete_bar"] = self.nbar

    def wait(self, vm=None, lg=None):
        parts = []
        if vm is not None:
            vm = min(vm, 63)
            k = len(self.vmq) - vm
            if k > 0:
                for x in self.vmq[:k]:
                    self.t = max(self.t, x.done); self._retire(x)
                self.vmq = self.vmq[k:]
            parts.append(f"vmcnt({vm})")
        if lg is not None:
            lg = min(lg, 15)
            k = len(self.lgq) - lg
            if k > 0:
                for x in self.lgq[:k]:
                    self.t = max(self.t, x.done); self._retire(x)
                self.lgq = self.lgq[k:]
            if lg == 0:
                for x in self.smem: self.t = max(self.t, x.done)
                self.smem = []
            parts.append(f"lgkmcnt({lg})")
        self._append(Ins("s_waitcnt " + " ".join(parts)))

    def _need(self, q, pred):
        idx = -1
        for k, x in enumerate(q):
            if pred(x): idx = k
        return None if idx < 0 else len(q) - 1 - idx

    def need_waits(self, regs, vm_ins=(), lg_ins=()):
        vm = self._need(self.vmq, lambda x: bool(x.defs & regs) or x in vm_ins)
        lg = self._need(self.lgq, lambda x: bool(x.defs & regs) or x in lg_ins)
        if any(x.defs & regs for x in self.smem): lg = 0
        if vm is not None or lg is not None:
            self.wait(vm, lg)

    def pad(self, ins):
        dist = 0; need = 0
        for p in reversed(self.out):
            if dist >= 20: break
            h = hazard(p, ins)
            if h - dist > need: need = h - dist
            dist += p.ws
        while need > 0:
            k = min(need, 16)
            self._append(Ins(f"s_nop {k-1}")); need -= k

    def I(self, text, after=(), **meta):
        ins = Ins(text, **meta)
        if ins.cls == "label":
            self._append(ins); return ins
        regs = ins.uses | ins.defs
        self.need_waits(regs, vm_ins=after, lg_ins=after)
        reg = meta.get("region")
        if reg is not None: self._lds_check(ins, reg)
        self.pad(ins)
        self._append(ins)
        if ins.cls in VMEM: self.vmq.append(ins)
        if ins.cls in ("dsr", "dsw"): self.lgq.append(ins)
        if ins.cls == "smem" and not meta.get("untracked"): self.smem.append(ins)
        if ins.cls == "barrier": self.nbar += 1
        for r in ins.defs:
            if r == ("x", "m0"): self.m0 = None
            if r[0] == "s":
                self.sval.pop(r[1], None)
                for k in [k for k, v in self.sval.items() if v[0] == r[1]]: self.sval.pop(k)
                if self.m0 is not None and self.m0[0] == r[1]: self.m0 = None
        return ins

    def raw(self, text):
        for l in text.strip("\n").split("\n"):
            l = l.strip()
            if l: self.I(l)

    def label(self, name):
        self.I(name + ":")

    def forget(self):
        self.m0 = None; self.sval = {}

    def drain(self):
        self.wait(0, 0)
        self._append(Ins("s_nop 15")); self._append(Ins("s_nop 3"))

    def region(self, name, lo, size, private=False, nreads=None):
        r = Region(name, lo, size, private)
        r.nreads_expected = nreads
        assert r.hi <= 163840, name
        r.older = [o for o in self.regions if o.overlaps(r)]
        self.regions.append(r)
        return r

    def _done_and_fenced(self, x, need_bar):
        cb = x.meta.get("complete_bar")
        if cb is None: return False
        return (self.nbar > cb) if need_bar else True

    def can_write(self, r):
        for o in r.older:
            if o.nreads_expected is not None and len(o.reads) < o.nreads_expected: return False
            same = r.private and o.private and r.lo == o.lo and r.hi == o.hi
            for x in o.reads + o.writes:
                if not self._done_and_fenced(x, not same): return False
        return True

    def _lds_check(self, ins, r):
        if ins.cls in ("dma", "dsw"):
            if not self.can_write(r): self.errors.append(f"WAR on {r.name}: {ins.text}")
            if r.reads and not ins.meta.get("rewrite"): self.errors.append(f"write after read inside {r.name}: {ins.text}")
            r.writes.append(ins)
        else:
            if r.nwrites_expected is not None and len(r.writes) < r.nwrites_expected:
                self.errors.append(f"read of incomplete {r.name}: {ins.text}")
            pend = [x for x in r.writes if x.meta.get("complete_bar") is None]
            if r.private and pend:
                self.need_waits(set(), vm_ins=pend, lg_ins=pend)
            for x in r.writes:
                if not self._done_and_fenced(x, not r.private):
                    self.errors.append(f"RAW on {r.name}: {ins.text}")
                    break
            for o in self.regions:
                if o is not r and r in getattr(o, "older", []) and o.writes:
                    self.errors.append(f"read of overwritten {r.name} (by {o.name}): {ins.text}")
            r.reads.append(ins)

    def barrier(self, needs=()):
        pend = [x for r in needs for x in r.writes if x.meta.get("complete_bar") is None]
        for r in needs:
            if r.nwrites_expected is not None and len(r.writes) < r.nwrites_expected:
                self.errors.append(f"barrier before all writes of {r.name} were issued")
        self.I("s_barrier", after=pend)

    def eta(self, needs):
        return max([x.done for r in needs for x in r.writes] + [0])

    def set_m0(self, base, const):
        if self.m0 == (base, const): return
        if base is None: self.I(f"s_mov_b32 m0, {const:#x}")
        else: self.I(f"s_add_u32 m0, s{base}, {const:#x}")
        self.m0 = (base, const)

    def set_s(self, sreg, base, const):
        if self.sval.get(sreg) == (base, const): return
        if base is None: self.I(f"s_mov_b32 s{sreg}, {const:#x}")
        else: self.I(f"s_add_u32 s{sreg}, s{base}, {const:#x}")
        self.sval[sreg] = (base, const)

    def mark(self, name):
        self.marks[name] = len(self.out)
        self.log.append((name, self.t, self.pipe_free))

    def text(self, a=0, b=None):
        L = []
        for x in self.out[a:b]:
            L.append(x.text if x.cls == "label" else "    " + x.text)
        return "\n".join(L)
```

```python
import sys, struct
sys.path.insert(0, "tools")
from dsl import *

NAME = "gated_mix__sliding_block__dense_activation_silu__prompt"
def f2u(x): return struct.unpack("<I", struct.pack("<f", x))[0]
LOG2E = 1.4426950408889634
NEG = f2u(-1e30)
PG = 4096

MB = 0x420000
GP = 0x8000
KVB = 0x10000
AB = 0x500000
STB = 0xE00000
WSN = 0x1000000
BIGV = 0x2000000

S_X, S_WQKV, S_W1, S_W2, S_WO, S_WS, S_OUT, S_GW, S_DBG = 4, 8, 12, 16, 20, 24, 28, 32, 36
S_P = 40
(sW, sI, sJ, sW2k, sW3k, sW4k, sWK, sWV, sT0, sT1, sKVl0, sKVl1, sKVl2, sKVs, sHs, sOs, sHl, sOl,
 sFkvW, sFkvR, sFhW, sFhR, sFoW, sGs, sGl, sOut, sTmo, sThr, sSafe, sGate, sZ, sRw2, sRwo, sT2) = range(64, 98)
S_ST = 98
def srd(b): return f"s[{b}:{b+3}]"

vLin, vZ = 1, 2
vXd = [3, 4, 5, 6]; vWK = [7, 8]; vW1d = [9, 10, 11]; vWQ = [12, 13]; vRd = [14, 15, 16, 17]
vXr = [18, 19, 20, 21]; vGx = 22; vWr = [23, 24]; vW1r = [25, 26]; vWQr = [27, 28]; vKr = 29; vVr = [30, 31]
vRr = [[32, 33], [34, 35], [36, 37]]; vGo = 38; vGw = 39
mD, mF = 40, 56
WF = 72
NB = 9
accKV = 108; accH = 140; accQ = 188; QF = 204; PB = 212
GX, GW_ = 212, 220
TMP = 228
KF = 72; VF = 80; SB = 108; OB = 140; EB = 188
accB = 40; accA = 108; vG = 204; vOut = 3; vExW = 4; vExR = 5
vSt = 0
vFkv, vFh, vFo = 6, 7, 8
SAFE = 30720
def V(b, n=1): return f"v{b}" if n == 1 else f"v[{b}:{b+n-1}]"
def A(b, n=4): return f"a[{b}:{b+n-1}]"


class Job:
    def __init__(self, name, text, m0=None, soff=None, region=None, lines=8, cond=None, after=None, tmin=None,
                 pre=None, lat=None):
        self.name = name; self.text = text; self.m0 = m0; self.soff = soff; self.region = region
        self.lines = lines; self.cond = cond; self.after = after; self.tmin = tmin; self.pre = pre; self.lat = lat
        self.ins = None


class Gen:
    def __init__(self, kv, cfg, slow_jobs=None):
        self.kv = kv
        self.cfg = cfg
        self.slow_jobs = slow_jobs
        self.P = Prog(lat=cfg.get("lat", 600))
        self.main = []; self.prio = []; self.jobs = {}
        self.rec = None
        self.flags = set()
        self.nst = 0
        self.fill = []
        self.lab = 0
        self.ool = []

    def I(self, *a, **k): return self.P.I(*a, **k)
    def raw(self, t): self.P.raw(t)

    def stamp(self, name):
        self.P.mark(name)
        if not self.cfg.get("debug"): return
        k = self.nst
        if k > 0:
            self.I(f"v_writelane_b32 v{vSt}, s{S_ST + 2*((k-1) & 1)}, {k-1}")
        self.I(f"s_memtime s[{S_ST + 2*(k & 1)}:{S_ST + 2*(k & 1) + 1}]", untracked=True)
        self.cfg.setdefault("stamps", {})[k] = name
        self.nst += 1

    def add(self, job, prio=False):
        (self.prio if prio else self.main).append(job); self.jobs[job.name] = job
        return job

    def ok(self, j):
        if j.region is not None and not self.P.can_write(j.region): return False
        if j.cond is not None and not j.cond(): return False
        return True

    def pick(self, H):
        P = self.P
        for j in self.prio:
            if self.ok(j) and (j.tmin is None or P.t >= j.tmin()): return j
        if P.pipe_free - P.t < H:
            for j in self.main[:self.cfg.get("window", 5)]:
                if self.ok(j): return j
        return None

    def setup(self, j):
        if j.pre is not None: j.pre()
        if j.soff is not None: self.P.set_s(*j.soff)
        if j.m0 is not None: self.P.set_m0(*j.m0)

    def fire(self, j):
        meta = dict(lines=j.lines)
        if j.region is not None: meta["region"] = j.region
        if j.lat is not None: meta["lat"] = j.lat
        j.ins = self.I(j.text, after=(j.after() if j.after else ()), **meta)
        j.t = self.P.t
        (self.prio if j in self.prio else self.main).remove(j)
        if self.rec is not None: self.rec.append(("job", j.name))

    def slot(self, H):
        j = self.pick(H)
        if j is not None:
            self.setup(j); self.fire(j)
        return j

    def force(self, names):
        for n in names:
            j = self.jobs[n]
            if j.ins is not None: continue
            if j in self.main:
                for o in list(self.main[:self.main.index(j)]):
                    if self.ok(o): self.setup(o); self.fire(o)
            if not self.ok(j): self.P.errors.append(f"forced job {n} is blocked")
            self.setup(j); self.fire(j)

    def issued(self, *names): return all(self.jobs[n].ins is not None for n in names)

    def bar(self, regs):
        P = self.P
        for r in regs: self.force(r.jobnames)
        while P.eta(regs) > P.t + 60:
            if self.slot(self.cfg.get("Hwait", 700)) is None:
                if not self.fill_some(4): break
        P.barrier(regs)
        for r in regs: r.fenced = True

    def fill_some(self, n):
        done = 0
        while done < n:
            for k, (cond, atom) in enumerate(self.fill):
                if cond is None or cond():
                    self.fill.pop(k)
                    if callable(atom): atom(); done += 1
                    else:
                        for x in atom: self.I(x)
                        done += len(atom)
                    break
            else:
                break
        return done

    def poll_text(self, kind, retry=False):
        ws = f"s[{S_WS}:{S_WS+1}]"
        if kind == "kv": return [f"s_load_dwordx8 s[{S_P}:{S_P+7}], {ws}, s{sFkvR} glc"]
        if kind == "h": return [f"s_load_dwordx16 s[{S_P}:{S_P+15}], {ws}, s{sFhR} glc"]
        if kind == "o": return [f"s_load_dwordx8 s[{S_P}:{S_P+7}], {ws}, s{sFhR} offset:64 glc"]
        if kind == "gate": return [f"s_load_dwordx4 s[{S_GW}:{S_GW+3}], s[{S_DBG}:{S_DBG+1}], 0x0" + (" glc" if retry else "")]

    def poll_issue(self, kind):
        for x in self.poll_text(kind): self.I(x, lat=self.cfg.get("latpoll", 700))
        if self.rec is not None: self.rec.append(("pi", kind))

    def poll_check(self, kind):
        self.lab += 1
        tag = f"{kind}{self.lab}" + ("s" if self.slow_jobs is not None and self.in_slow else "")
        self.P.label(f"Lp_{tag}")
        self.P.wait(lg=0)
        n = {"kv": 3, "h": 8, "o": 4, "gate": 2}[kind]
        B = S_GW if kind == "gate" else S_P
        if kind == "kv":
            for k in range(3):
                self.I(f"s_cmp_eq_u32 s{sKVl0+k}, {WSN:#x}")
                self.I(f"s_cselect_b64 s[{B+2*k}:{B+2*k+1}], -1, s[{B+2*k}:{B+2*k+1}]")
        for k in range(1, n):
            self.I(f"s_and_b64 s[{B}:{B+1}], s[{B}:{B+1}], s[{B+2*k}:{B+2*k+1}]")
        r = sSafe if kind == "kv" else B
        self.I(f"s_and_b32 s{r}, s{B}, s{B+1}")
        if kind == "gate": self.I(f"s_cmp_eq_u32 s{r}, -1")
        else: self.I(f"s_bitcmp1_b32 s{r}, 0")
        self.I(f"s_cbranch_scc0 Lr_{tag}")
        self.P.label(f"Ld_{tag}")
        L = [f"Lr_{tag}:"] + ["    " + x for x in self.poll_text(kind, True)]
        L += [f"    s_sub_u32 s{sTmo}, s{sTmo}, 1", f"    s_cbranch_scc0 Lp_{tag}", f"    s_mov_b32 s{sTmo}, 0",
              "    s_waitcnt lgkmcnt(0)", f"    s_branch Ld_{tag}"]
        self.ool.append((self.in_slow, "\n".join(L)))
        self.flags.add("poll_" + kind)
        if self.rec is not None: self.rec.append(("pc", kind))

    def build(self):
        P = self.P; cfg = self.cfg; I = self.I
        self.in_slow = False
        def reg(name, page, size, jobs, private=False, nreads=None, nwrites=None):
            r = P.region(name, page * PG, size, private, nreads); r.jobnames = jobs; r.fenced = False
            r.nwrites_expected = nwrites if nwrites is not None else len(jobs)
            return r
        xpage = [0, 4, 8, 12, 16, 20, 0, 4]
        RX, RWK = [], []
        for s in range(8):
            RX.append(reg(f"X{s}", xpage[s], 4 * PG, [f"X{s}_{q}" for q in range(4)], True, 5))
        for s in range(8):
            RWK.append(reg(f"WK{s}", 24 + 2 * s, 2 * PG, [f"WK{s}_{u}" for u in range(2)], False, 16))
        w1page = [24, 27, 8, 11, 14, 17, 30, 33]
        RW1 = [reg(f"W1{s}", w1page[s], 3 * PG, [f"W1{s}_{t}" for t in range(3)], False, 24) for s in range(8)]
        wqpage = [20, 22, 36, 38]
        RWQ = [reg(f"WQ{s}", wqpage[s], 2 * PG, [f"WQ{s}_{u}" for u in range(2)], False, 16) for s in range(4)]
        RK = reg("K", 24, 6 * PG, [f"K{b}_{h}" for b in range(3) for h in range(2)], False, 18)
        RV = reg("V", 0, 24 * 1280, [f"V{b}_{h}" for b in range(3) for h in range(2)], False, 36, nwrites=8)
        RS = P.region("SAFE", SAFE, 1024, False, 1); RS.jobnames = []; RS.fenced = False; RS.nwrites_expected = 1
        rgpage = [8, 12, 16, 30, 20, 34, 0, 4, 24, 8, 12, 16, 30, 20, 34]
        rounds = [(g, k) for g in range(11) for k in range(4) if 4 * g + k < 43] + \
                 [(g, k) for g in range(11, 15) for k in range(4)]
        RG = []
        for g in range(15):
            ks = [k for (gg, k) in rounds if gg == g]
            RG.append(reg(f"RG{g}", rgpage[g], 4 * PG, [f"R{g}_{k}" for k in ks], False, 4 * len(ks)))
        REX = reg("EX", 0, 4 * PG, [], False, 4, nwrites=4)

        def xjobs(s):
            for q in range(4):
                self.add(Job(f"X{s}_{q}", f"buffer_load_dwordx4 v{vXd[q]}, {srd(S_X)}, s{sT0} offen offset:{1024*q} lds",
                             m0=(sW4k, RX[s].lo), soff=(sT0, None, 128 * s), region=RX[s], lat=cfg.get("lat0", 1200)))
        def wkjobs(s):
            for u in range(2):
                self.add(Job(f"WK{s}_{u}", f"buffer_load_dwordx4 v{vWK[u]}, {srd(S_WQKV)}, s{sT0} offen offset:{1024*u} lds",
                             m0=(sW2k, RWK[s].lo), soff=(sT0, None, 64 * s * 3072), region=RWK[s], lat=cfg.get("lat0", 1200)))
        for s in range(8):
            xjobs(s); wkjobs(s)
            if s == 1:
                for k in range(8):
                    self.add(Job(f"GW{k}", f"buffer_load_dword v{GW_+k}, v{vGw}, {srd(S_GW)}, 0 offen offset:{128*k}", lines=1,
                                 cond=lambda: "vGw" in self.flags))
        for s in range(8):
            for t in range(3):
                self.add(Job(f"W1{s}_{t}", f"buffer_load_dwordx4 v{vW1d[t]}, {srd(S_W1)}, s{sT0} offen offset:{1024*t} lds",
                             m0=(sW3k, RW1[s].lo), soff=(sT0, None, 64 * s * 2752), region=RW1[s], lines=11,
                             cond=lambda: "addr2" in self.flags))
        for s in range(4):
            for u in range(2):
                self.add(Job(f"WQ{s}_{u}", f"buffer_load_dwordx4 v{vWQ[u]}, {srd(S_WQKV)}, s{sT0} offen offset:{1024*u} lds",
                             m0=(sW2k, RWQ[s].lo), soff=(sT0, None, 128 * s * 3072), region=RWQ[s], lines=16,
                             cond=lambda: "addr2" in self.flags))
        def rjobs(g):
            for (gg, k) in rounds:
                if gg != g: continue
                if g < 11: sr, so = S_W2, (sT0, sRw2, g * 65536)
                else: sr, so = S_WO, (sT0, sRwo, (g - 11) * 65536)
                self.add(Job(f"R{g}_{k}", f"buffer_load_dwordx4 v{vRd[k]}, {srd(sr)}, s{sT0} offen offset:{1024*k} lds",
                             m0=(sW4k, RG[g].lo), soff=so, region=RG[g], cond=lambda: "addr2" in self.flags))
        rjobs(0)
        kvok = lambda: "poll_kv" in self.flags
        for b in range(3):
            for h in range(2):
                self.add(Job(f"K{b}_{h}", f"buffer_load_dwordx4 v{vLin}, {srd(S_WS)}, s{sKVl0+b} offen offset:{1024*h} sc1 lds",
                             m0=(sWK, RK.lo + 2048 * b), region=RK, cond=kvok, lat=900))
            for h in range(2):
                self.add(Job(f"V{b}_{h}", f"buffer_load_dwordx4 v{vLin}, {srd(S_WS)}, s{sT0} offen offset:{1024*h} sc1 lds",
                             m0=(sWV, RV.lo + 2560 * b + 256 * h), soff=(sT0, sKVl0 + b, 32768), region=RV, cond=kvok, lat=900))
        for g in range(1, 6): rjobs(g)
        hok = lambda: "poll_h" in self.flags
        self.add(Job("G", f"buffer_load_dwordx2 {V(vG+8,2) if False else V(254,2)}, v{vGw}, {srd(S_WS)}, s{sGl} offen sc1", lines=2, cond=hok, lat=900))
        hj = [Job(f"H{a}", f"buffer_load_dwordx4 {A(4*a)}, v{vLin}, {srd(S_WS)}, s{sT1} offen offset:{1024*(a%4)} sc1",
                  soff=(sT1, sHl, 4096 * (a // 4)), cond=hok, lat=900) for a in range(43)]
        ook = lambda: "poll_o" in self.flags
        oj = [Job(f"O{a}", f"buffer_load_dwordx4 {A(172+4*a)}, v{vLin}, {srd(S_WS)}, s{sT1} offen offset:{1024*(a%4)} sc1",
                  soff=(sT1, sOl, 4096 * (a // 4)), cond=ook, lat=900) for a in range(16)]
        hsplit = cfg.get("hsplit", 36)
        for a in range(hsplit): self.add(hj[a])
        rjobs(6)
        for a in range(hsplit, 43): self.add(hj[a])
        rjobs(7); rjobs(8); rjobs(9); rjobs(10)
        for g in range(11, 15):
            rjobs(g)
            for a in range(4): self.add(oj[4 * (g - 11) + a])

        self.raw(f"""
            s_cmp_ge_u32 s2, 0x100
            s_cbranch_scc1 L_end
            s_load_dwordx2 s[{S_X}:{S_X+1}], s[0:1], 0
            s_load_dwordx2 s[{S_WQKV}:{S_WQKV+1}], s[0:1], 8
            s_load_dwordx2 s[{S_W1}:{S_W1+1}], s[0:1], 32
            s_load_dwordx2 s[{S_GW}:{S_GW+1}], s[0:1], 48
            s_load_dwordx2 s[{S_WS}:{S_WS+1}], s[0:1], 72
            s_load_dwordx2 s[{S_DBG}:{S_DBG+1}], s[0:1], 64
            s_load_dwordx2 s[{S_W2}:{S_W2+1}], s[0:1], 40
            s_load_dwordx2 s[{S_WO}:{S_WO+1}], s[0:1], 16
            s_load_dwordx2 s[{S_OUT}:{S_OUT+1}], s[0:1], 56
        """)
        t = TMP
        vL, vH, vL31, vL3s, vL4s, vSw = t, t + 1, t + 2, t + 3, t + 4, t + 5
        a, b, c = t + 6, t + 7, t + 8
        sXcd, sS, sRb, sG_, sKh, sMh, sRb3, sC = S_P, S_P + 1, S_P + 2, S_P + 3, S_P + 4, S_P + 5, S_P + 6, S_P + 7
        sa, sb = S_P + 8, S_P + 9
        self.raw(f"""
            v_lshrrev_b32 v{a}, 6, v0
            v_and_b32 v{vL}, 63, v0
            v_readfirstlane_b32 s{sW}, v{a}
            s_and_b32 s{sXcd}, s2, 7
            s_lshr_b32 s{sS}, s2, 3
            s_and_b32 s{sa}, s{sXcd}, 1
            s_lshl_b32 s{sa}, s{sa}, 3
            s_and_b32 s{sb}, s{sS}, 7
            s_add_u32 s{sI}, s{sa}, s{sb}
            s_lshr_b32 s{sa}, s{sXcd}, 1
            s_lshl_b32 s{sa}, s{sa}, 2
            s_lshr_b32 s{sb}, s{sS}, 3
            s_add_u32 s{sJ}, s{sa}, s{sb}
            s_lshl_b32 s{sRb}, s{sI}, 2
            s_add_u32 s{sRb}, s{sRb}, s{sW}
            s_lshl_b32 s{sW4k}, s{sW}, 12
            s_lshl_b32 s{sW2k}, s{sW}, 11
            s_lshr_b32 s{sG_}, s{sJ}, 1
            v_lshrrev_b32 v{vL3s}, 3, v{vL}
            v_lshrrev_b32 v{vL4s}, 4, v{vL}
            v_and_b32 v{a}, 7, v{vL}
            v_xor_b32 v{b}, v{a}, v{vL4s}
            v_lshlrev_b32 v{b}, 4, v{b}
            v_lshl_add_u32 v{b}, v{vL3s}, 10, v{b}
            s_lshl_b32 s{sa}, s{sRb}, 15
            v_add_u32 v{vXd[0]}, s{sa}, v{b}
            v_xor_b32 v{vXd[1]}, 64, v{vXd[0]}
            v_add_u32 v{vXd[1]}, 7168, v{vXd[1]}
            v_add_u32 v{vXd[2]}, 14336, v{vXd[0]}
            v_add_u32 v{vXd[3]}, 14336, v{vXd[1]}
            v_and_b32 v{b}, 1, v{vL4s}
            v_lshlrev_b32 v{b}, 2, v{b}
            v_xor_b32 v{b}, v{a}, v{b}
            v_lshlrev_b32 v{vSw}, 4, v{b}
            s_and_b32 s{sa}, s{sJ}, 1
            s_lshl_b32 s{sa}, s{sa}, 10
            s_lshl_b32 s{sb}, s{sG_}, 7
            s_add_u32 s{sa}, s{sa}, s{sb}
            s_mul_i32 s{sb}, s{sW}, {16*3072}
            s_add_u32 s{sa}, s{sa}, s{sb}
            s_add_u32 s{sa}, s{sa}, 1024
            v_mul_u32_u24 v{b}, 3072, v{vL3s}
            v_add3_u32 v{vWK[0]}, v{b}, v{vSw}, s{sa}
            v_add_u32 v{vWK[1]}, 23552, v{vWK[0]}
            s_mov_b32 s{S_X+2}, {2048*1024}
            s_mov_b32 s{S_X+3}, 0x20000
            s_mov_b32 s{S_WQKV+2}, {512*3072}
            s_mov_b32 s{S_WQKV+3}, 0x20000
            s_mov_b32 s{S_GW+2}, 1024
            s_mov_b32 s{S_GW+3}, 0x20000
            s_mov_b32 s{S_WS+2}, {WSN:#x}
            s_mov_b32 s{S_WS+3}, 0x20000
            s_mov_b32 s{S_DBG+2}, 256
            s_mov_b32 s{S_DBG+3}, 0x20000
            s_mov_b32 s{S_W2+2}, {1376*1024}
            s_mov_b32 s{S_W2+3}, 0x20000
            s_mov_b32 s{S_WO+2}, {512*1024}
            s_mov_b32 s{S_WO+3}, 0x20000
            s_mov_b32 s{S_OUT+2}, {2048*1024}
            s_mov_b32 s{S_OUT+3}, 0x20000
            s_cmp_eq_u32 s{sJ}, 15
            s_cselect_b32 s{S_W1+2}, 0, {512*2752}
            s_mov_b32 s{S_W1+3}, 0x20000
            v_lshlrev_b32 v{vLin}, 4, v{vL}
            v_lshrrev_b32 v{vH}, 5, v{vL}
            v_and_b32 v{vL31}, 31, v{vL}
            v_lshlrev_b32 v{vGw}, 2, v{vL31}
        """)
        self.flags.add("vGw")
        P.wait(lg=0)
        P.t = max(P.t, cfg.get("tkarg", 500))
        self.stamp("karg")
        if cfg.get("debug"): I("s_memrealtime s[0:1]", untracked=True)
        self.force(RX[0].jobnames + RWK[0].jobnames)
        self.raw(f"""
            s_cmp_lt_u32 s2, 16
            s_cselect_b32 s{sZ}, 1, 0
            s_cbranch_scc0 L_nozero
            v_mov_b32 v{244}, 0
            v_mov_b32 v{245}, 0
            v_mov_b32 v{246}, 0
            v_mov_b32 v{247}, 0
            s_lshl_b32 s{sa}, s2, 13
            s_add_u32 s{sa}, s{sa}, s{sW2k}
            s_add_u32 s{sa}, s{sa}, {MB:#x}
        """)
        for k in range(2):
            x = Ins(f"buffer_store_dwordx4 v[244:247], v{vLin}, {srd(S_WS)}, s{sa} offen offset:{1024*k} sc1"); P.pad(x); P.out.append(x)
        P.out.append(Ins("s_nop 1"))
        P.label("L_nozero")
        self.force(RX[1].jobnames + RWK[1].jobnames)

        F = self.fill
        def atoms(txt, cond=None):
            for l in txt.strip("\n").split("\n"):
                l = l.strip()
                if not l: continue
                F.append((cond, [x.strip() for x in l.split(";;")]))
        def flag(name): F.append((None, lambda: self.flags.add(name)))
        vR, vB4, vTb = t + 9, t + 10, t + 11
        atoms(f"""
            v_lshrrev_b32 v{a}, 1, v{vL31}
            v_and_b32 v{a}, 7, v{a}
            v_xor_b32 v{a}, v{a}, v{vH}
            v_lshlrev_b32 v{a}, 4, v{a}
            v_lshl_add_u32 v{a}, v{vL31}, 7, v{a}
            v_add_u32 v{vXr[0]}, s{sW4k}, v{a}
            v_xor_b32 v{vXr[1]}, 32, v{vXr[0]}
            v_xor_b32 v{vXr[2]}, 64, v{vXr[0]}
            v_xor_b32 v{vXr[3]}, 0x60, v{vXr[0]}
            v_bfe_u32 v{vR}, v{vL}, 2, 2
            v_and_b32 v{a}, 3, v{vL}
            v_lshlrev_b32 v{a}, 3, v{a}
            v_and_b32 v{b}, 1, v{vL4s}
            v_lshl_add_u32 v{vB4}, v{b}, 5, v{a}
            v_and_b32 v{b}, 1, v{vL3s}
            v_lshlrev_b32 v{vTb}, 6, v{b}
            v_lshl_add_u32 v{c}, v{vH}, 3, v{vR}
            v_lshl_add_u32 v{a}, v{c}, 7, v{vB4}
            v_add_u32 v{a}, {24*PG}, v{a}
            v_add_u32 v{vWr[0]}, v{a}, v{vTb}
            v_xor_b32 v{vWr[1]}, 64, v{vWr[0]}
            s_and_b32 s{sa}, s{sJ}, 7
            v_lshrrev_b32 v{a}, 2, v{vL31}
            v_xor_b32 v{a}, s{sa}, v{a}
            v_lshlrev_b32 v{a}, 4, v{a}
            v_and_b32 v{b}, 3, v{vL}
            v_lshl_add_u32 v{a}, v{b}, 2, v{a}
            v_lshl_add_u32 v{a}, v{vH}, 7, v{a}
            s_lshl_b32 s{sa}, s{sJ}, 8
            s_add_u32 s{sa}, s{sa}, s{sW4k}
            v_add_u32 v{vGx}, s{sa}, v{a}
        """)
        atoms(f"""
            v_mov_b32 v{b}, {BIGV:#x}
            v_cmp_eq_u32 vcc, 0, v{vL} ;; v_cndmask_b32 v{vZ}, v{b}, 0, vcc
        """)
        flag("vZ")
        flag("addr1")
        atoms(f"""
            v_mul_u32_u24 v{a}, 192, v{c}
            v_add_u32 v{a}, v{a}, v{vB4}
            v_add_u32 v{vW1r[0]}, {8*PG}, v{a}
            v_add_u32 v{vW1r[1]}, {24*PG}, v{a}
            v_lshl_add_u32 v{a}, v{c}, 6, v{vB4}
            v_add_u32 v{vWQr[0]}, {20*PG}, v{a}
            v_add_u32 v{vWQr[1]}, {36*PG}, v{a}
            s_mul_i32 s{sW3k}, s{sW}, 3072
            s_mul_i32 s{sa}, s{sW}, {16*2752}
            s_mul_i32 s{sb}, s{sJ}, 192
            s_add_u32 s{sa}, s{sa}, s{sb}
        """)
        for k in range(3):
            atoms(f"""
                v_add_u32 v{a}, {64*k}, v{vL}
                v_mul_u32_u24 v{b}, 0xaaab, v{a}
                v_lshrrev_b32 v{b}, 19, v{b}
                v_mul_u32_u24 v{vW1d[k]}, 12, v{b}
                v_sub_u32 v{a}, v{a}, v{vW1d[k]}
                v_mul_u32_u24 v{b}, 2752, v{b}
                v_lshl_add_u32 v{a}, v{a}, 4, v{b}
                v_add_u32 v{vW1d[k]}, s{sa}, v{a}
            """)
            if k: atoms(f"v_subrev_u32 v{vW1d[k]}, {1024*k}, v{vW1d[k]}")
        atoms(f"""
            s_mul_i32 s{sa}, s{sW}, {32*3072}
            s_lshl_b32 s{sb}, s{sJ}, 6
            s_add_u32 s{sa}, s{sa}, s{sb}
            v_lshrrev_b32 v{a}, 2, v{vL}
            v_mul_u32_u24 v{a}, 3072, v{a}
            v_and_b32 v{b}, 3, v{vL}
            v_lshl_add_u32 v{a}, v{b}, 4, v{a}
            v_add_u32 v{vWQ[0]}, s{sa}, v{a}
            v_add_u32 v{vWQ[1]}, 48128, v{vWQ[0]}
            s_lshr_b32 s{sKh}, s{sW}, 1
            s_and_b32 s{sMh}, s{sW}, 1
            s_lshr_b32 s{sC}, s{sS}, 2
            s_lshl_b32 s{sa}, s{sXcd}, 2
            s_and_b32 s{sb}, s{sS}, 3
            s_add_u32 s{sa}, s{sa}, s{sb}
            s_lshl_b32 s{sRb3}, s{sa}, 1
            s_add_u32 s{sRb3}, s{sRb3}, s{sMh}
            s_lshl_b32 s{sa}, s{sMh}, 13
            s_lshl_b32 s{sb}, s{sC}, 7
            s_add_u32 s{sa}, s{sa}, s{sb}
            v_lshl_add_u32 v{a}, v{vL3s}, 10, v{vSw}
            v_add_u32 v{vRd[0]}, s{sa}, v{a}
            v_add_u32 v{vRd[1]}, 15360, v{vRd[0]}
            v_add_u32 v{vRd[2]}, 30720, v{vRd[0]}
            v_add_u32 v{vRd[3]}, 46080, v{vRd[0]}
            s_mul_i32 s{sRw2}, s{sKh}, {43*16384}
            s_lshl_b32 s{sRwo}, s{sKh}, 18
        """)
        flag("addr2")
        atoms(f"""
            s_mul_i32 s{sWK}, s{sW}, 6144
            s_mul_i32 s{sWV}, s{sW}, 7680
            v_mov_b32 v{b}, {BIGV:#x}
            v_lshlrev_b32 v{a}, 3, v{vH}
            v_cmp_eq_u32 vcc, 31, v{vL31}
            v_add_u32 v{a}, s{sW2k}, v{vLin}
            v_add_u32 v{vKr}, {24*PG}, v{a}
            v_and_b32 v{a}, 15, v{vL}
            v_lshlrev_b32 v{a}, 4, v{a}
            v_lshl_add_u32 v{b}, v{vH}, 9, v{a}
            v_add_u32 v{a}, 1024, v{a}
            s_mul_i32 s{sa}, s{sW}, 2560
            v_cmp_gt_u32 vcc, 16, v{vL31}
            v_add_u32 v{vVr[0]}, s{sa}, v{vVr[0]}
            v_add_u32 v{vVr[1]}, s{sa}, v{vVr[1]}
            v_lshl_add_u32 v{a}, v{vH}, 2, v{vR}
            v_lshl_add_u32 v{a}, v{a}, 7, v{vB4}
            s_lshl_b32 s{sa}, s{sKh}, 13
            v_add3_u32 v{vRr[0][0]}, v{a}, v{vTb}, s{sa}
            v_xor_b32 v{vRr[0][1]}, 64, v{vRr[0][0]}
            v_add_u32 v{vRr[1][0]}, {16*PG}, v{vRr[0][0]}
            v_add_u32 v{vRr[1][1]}, {16*PG}, v{vRr[0][1]}
            v_add_u32 v{vRr[2][0]}, {32*PG}, v{vRr[0][0]}
            v_add_u32 v{vRr[2][1]}, {32*PG}, v{vRr[0][1]}
            s_lshl_b32 s{sa}, s{sRb}, 16
            s_and_b32 s{sb}, s{sJ}, 1
            s_lshl_b32 s{sb}, s{sb}, 15
            s_add_u32 s{sa}, s{sa}, s{sb}
            s_lshl_b32 s{sb}, s{sG_}, 12
            s_add_u32 s{sa}, s{sa}, s{sb}
            s_add_u32 s{sKVs}, s{sa}, {KVB:#x}
            s_lshl_b32 s{sa}, s{sRb}, 17
            s_mul_i32 s{sb}, s{sJ}, 6144
            s_add_u32 s{sHs}, s{sa}, s{sb}
            s_add_u32 s{sHs}, s{sHs}, {AB:#x}
            s_lshl_b32 s{sb}, s{sJ}, 11
            s_add_u32 s{sOs}, s{sa}, s{sb}
            s_add_u32 s{sOs}, s{sOs}, {AB + 96*1024:#x}
            s_lshl_b32 s{sa}, s{sRb3}, 17
            s_mul_i32 s{sb}, s{sKh}, {43*1024}
            s_add_u32 s{sHl}, s{sa}, s{sb}
            s_add_u32 s{sHl}, s{sHl}, {AB:#x}
            s_lshl_b32 s{sb}, s{sKh}, 14
            s_add_u32 s{sOl}, s{sa}, s{sb}
            s_add_u32 s{sOl}, s{sOl}, {AB + 96*1024:#x}
            s_lshl_b32 s{sa}, s{sI}, 13
            s_lshl_b32 s{sb}, s{sJ}, 9
            s_add_u32 s{sa}, s{sa}, s{sb}
            s_lshl_b32 s{sb}, s{sW}, 7
            s_add_u32 s{sa}, s{sa}, s{sb}
            s_add_u32 s{sFkvR}, s{sa}, {MB + 96:#x}
            s_lshl_b32 s{sa}, s{sI}, 13
            s_lshl_b32 s{sb}, s{sG_}, 10
            s_add_u32 s{sa}, s{sa}, s{sb}
            s_and_b32 s{sb}, s{sJ}, 1
            s_lshl_b32 s{sb}, s{sb}, 2
            s_add_u32 s{sa}, s{sa}, s{sb}
            s_add_u32 s{sFkvW}, s{sa}, {MB + 96:#x}
            s_lshl_b32 s{sa}, s{sRb}, 11
            s_lshl_b32 s{sb}, s{sJ}, 2
            s_add_u32 s{sb}, s{sa}, s{sb}
            s_add_u32 s{sFhW}, s{sb}, {MB:#x}
            s_lshr_b32 s{sb}, s{sJ}, 3
            s_mul_i32 s{sb}, s{sb}, 96
            s_add_u32 s{sFoW}, s{sFhW}, s{sb}
            s_add_u32 s{sFoW}, s{sFoW}, 64
            s_lshl_b32 s{sa}, s{sRb3}, 11
            s_lshl_b32 s{sb}, s{sC}, 8
            s_add_u32 s{sa}, s{sa}, s{sb}
            s_lshl_b32 s{sb}, s{sKh}, 7
            s_add_u32 s{sa}, s{sa}, s{sb}
            s_add_u32 s{sFhR}, s{sa}, {MB:#x}
            s_lshl_b32 s{sa}, s{sRb}, 8
            s_lshl_b32 s{sb}, s{sJ}, 4
            s_add_u32 s{sa}, s{sa}, s{sb}
            s_add_u32 s{sGs}, s{sa}, {GP:#x}
            s_lshl_b32 s{sa}, s{sRb3}, 8
            s_add_u32 s{sGl}, s{sa}, {GP:#x}
            s_lshl_b32 s{sa}, s{sRb3}, 15
            s_lshl_b32 s{sb}, s{sC}, 7
            s_add_u32 s{sa}, s{sa}, s{sb}
            s_lshl_b32 s{sb}, s{sKh}, 6
            s_add_u32 s{sOut}, s{sa}, s{sb}
            s_mov_b32 s{sTmo}, {cfg.get('tmo', 20000)}
            s_mov_b32 s{sThr}, {f2u(110.0):#x}
            s_bitcmp1_b32 s{sJ}, 0
            s_lshl_b32 s{sa}, s{sI}, 2
            s_mul_i32 s{sb}, s{sW}, 3
            s_add_u32 s{sa}, s{sa}, s{sb}
            s_lshl_b32 s{sb}, s{sJ}, 11
            s_add_u32 s{sb}, s{sb}, {(KVB - 8*65536) & 0xffffffff:#x}
        """)
        for k in range(3):
            atoms(f"""
                s_add_u32 s{sT2}, s{sa}, {k}
            """)
        vQm, vNeg = t + 12, t + 13
        atoms(f"""
            v_lshlrev_b32 v{a}, 2, v{vH}
            v_sub_u32 v{vQm}, v{vL31}, v{a}
            v_mov_b32 v{vNeg}, {NEG:#x}
        """)
        for r0 in range(0, 16, 4):
            L = []
            for r in range(r0, r0 + 4):
                L.append(f"v_cmp_le_i32 s[{S_P+10+2*(r-r0)}:{S_P+11+2*(r-r0)}], {(r&3)+8*(r>>2)}, v{vQm}")
            for r in range(r0, r0 + 4):
                m = f"s[{S_P+10+2*(r-r0)}:{S_P+11+2*(r-r0)}]"
                L.append(f"v_cndmask_b32 v{mD+r}, v{vNeg}, 0, {m}")
                L.append(f"v_cndmask_b32 v{mF+r}, 0, v{vNeg}, {m}")
            atoms("\n".join(L))
        vOa, vOv = t + 14, t + 16
        atoms(f"""
            s_mul_i32 s{sa}, s{sW}, 6
            v_add_u32 v{vOa}, s{sa}, v{vL4s}
            v_and_b32 v{a}, 1, v{vL4s}
            v_add3_u32 v{vOa+1}, v{a}, 4, s{sa}
            s_lshl_b32 s{sb}, s{sI}, 3
            v_mov_b32 v{b}, 0x3f803f80
            v_add_u32 v{a}, s{sb}, v{vOa}
            v_add_u32 v{a}, s{sb}, v{vOa+1}
            v_and_b32 v{a}, 15, v{vL}
            v_lshlrev_b32 v{a}, 4, v{a}
            v_add_u32 v{a}, 1024, v{a}
            v_mul_u32_u24 v{vOa}, 1280, v{vOa}
            v_add_u32 v{vOa}, v{vOa}, v{a}
            v_mul_u32_u24 v{vOa+1}, 1280, v{vOa+1}
            v_add_u32 v{vOa+1}, v{vOa+1}, v{a}
        """)
        flag("addr3")
        while "addr1" not in self.flags:
            self.slot(cfg.get("H0", 900)); self.fill_some(8)

        items = []
        for s in range(8):
            for kk in range(4):
                for tl in range(2): items.append(("kv", tl, 4 * s + kk))
        n1 = len(items)
        split = cfg.get("split", 5)
        for ks in range(4 * split):
            for tl in range(3): items.append(("h", tl, ks))
        marks = {}
        for tl in range(3):
            for ks in range(4 * split, 32): items.append(("h", tl, ks))
            marks[tl] = len(items)
        for ks in range(32): items.append(("q", 0, ks))
        nall = len(items)
        LA = cfg.get("LA", 5)
        xbias = [0]

        def reads(m):
            kind, tl, ks = items[m]
            fb = WF + 4 * (m % NB)
            if kind == "kv":
                s, kk = ks // 4, ks % 4
                if not RWK[s].fenced:
                    self.bar([RX[s], RWK[s]])
                    if s in (1, 4): self.stamp(f"bar1_{s}")
                    if s == 1:
                        self.raw(f"""
                            s_cmp_eq_u32 s{sZ}, 0
                            s_cbranch_scc1 L_nogate{self.kv}
                            v_mov_b32 v{253}, -1
                        """)
                        assert "vZ" in self.flags
                        x = Ins(f"buffer_store_byte v253, v{vZ}, {srd(S_DBG)}, s2 offen sc1"); P.out.append(x)
                        P.label(f"L_nogate{self.kv}")
                want = 65536 if xpage[s] >= 16 else 0
                if want != xbias[0]:
                    d = want - xbias[0]
                    for r in vXr + [vGx]:
                        I(f"v_add_u32 v{r}, {d}, v{r}" if d > 0 else f"v_subrev_u32 v{r}, {-d}, v{r}")
                    xbias[0] = want
                if tl == 0:
                    I(f"ds_read_b128 {A(4*ks)}, v{vXr[kk]} offset:{RX[s].lo - want}", region=RX[s])
                for q in range(2):
                    I(f"ds_read_b64_tr_b16 {V(fb+2*q,2)}, v{vWr[tl]} offset:{RWK[s].lo - 24*PG + 2048*kk + 512*q}", region=RWK[s])
                if tl == 1 and kk == 0:
                    I(f"ds_read_b32 v{GX+s}, v{vGx} offset:{RX[s].lo - want}", region=RX[s])
                    self.flags.add(f"gx{s}")
            elif kind == "h":
                s, kk = ks // 4, ks % 4
                r = RW1[s]
                if not r.fenced:
                    grp = [r] + [x for x in RW1[s+1:] if s >= split and cfg.get("tailbar", True)]
                    self.bar(grp)
                hi = r.lo >= 24 * PG
                for q in range(2):
                    I(f"ds_read_b64_tr_b16 {V(fb+2*q,2)}, v{vW1r[hi]} offset:{r.lo - (24 if hi else 8)*PG + 3072*kk + 768*q + 64*tl}", region=r)
            else:
                s, kk = ks // 8, ks % 8
                r = RWQ[s]
                if not r.fenced: self.bar([r])
                hi = r.lo >= 36 * PG
                for q in range(2):
                    I(f"ds_read_b64_tr_b16 {V(fb+2*q,2)}, v{vWQr[hi]} offset:{r.lo - (36 if hi else 20)*PG + 1024*kk + 256*q}", region=r)

        def mfma(m):
            kind, tl, ks = items[m]
            fb = V(WF + 4 * (m % NB), 4); x = A(4 * ks)
            acc = {"kv": accKV, "h": accH, "q": accQ}[kind] + 16 * tl
            cc = "0" if ks == 0 else V(acc, 16)
            if kind == "kv" and self.kv == "V": return f"v_mfma_f32_32x32x16_bf16 {V(acc,16)}, {x}, {fb}, {cc}"
            return f"v_mfma_f32_32x32x16_bf16 {V(acc,16)}, {fb}, {x}, {cc}"

        ga = t + 18; g0, g1, g2, g3 = t + 19, t + 20, t + 21, t + 22
        cur = [0]
        for s in range(8):
            cnd = (lambda s=s: f"gx{s}" in self.flags and self.issued(f"GW{s}") and cur[0] >= 8 * s + 4 and cur[0] >= 20)
            atoms(f"""
                v_lshlrev_b32 v{g0}, 16, v{GX+s}
                v_mul_f32 v{g0}, v{g0}, v{g2}
                v_lshlrev_b32 v{g1}, 16, v{g0} ;; v_and_b32 v{g0}, 0xffff0000, v{g0} ;; v_add_f32 v{g0}, v{g0}, v{g1} ;; {'v_mov_b32 v%d, v%d' % (ga, g0) if s == 0 else 'v_add_f32 v%d, v%d, v%d' % (ga, ga, g0)}
            """, cnd)
        cnd = lambda: cur[0] >= 8 * 7 + 4
        atoms(f"""
            v_add_f32_dpp v{ga}, v{ga}, v{ga} row_ror:8 row_mask:0xf bank_mask:0xf
            v_add_f32_dpp v{ga}, v{ga}, v{ga} row_ror:4 row_mask:0xf bank_mask:0xf
            v_add_f32_dpp v{ga}, v{ga}, v{ga} row_ror:2 row_mask:0xf bank_mask:0xf
            v_add_f32_dpp v{ga}, v{ga}, v{ga} row_ror:1 row_mask:0xf bank_mask:0xf
            v_add_f32_dpp v{ga}, v{ga}, v{ga} row_bcast:15 row_mask:0xa bank_mask:0xf
            v_cvt_pk_bf16_f32 v{ga}, v{ga}, v{ga}
            v_lshlrev_b32 v{ga}, 16, v{ga}
            v_mul_f32 v{ga}, {f2u(-LOG2E):#x}, v{ga}
            v_exp_f32 v{ga}, v{ga}
            v_add_f32 v{ga}, 1.0, v{ga}
            v_rcp_f32 v{ga}, v{ga}
            v_cvt_pk_bf16_f32 v{ga}, v{ga}, v{ga}
            v_lshlrev_b32 v{g1}, 16, v{ga}
            v_sub_f32 v{g2}, 1.0, v{g1}
            v_cvt_pk_bf16_f32 v{g2}, v{g2}, v{g2}
            v_lshlrev_b32 v{g2}, 16, v{g2}
        """, cnd)
        assert g1 % 2 == 0
        F.append((cnd, lambda: self.flags.add("gate")))
        self.add(Job("Gst", f"buffer_store_dwordx2 {V(g1,2)}, v{vGo}, {srd(S_WS)}, s{sGs} offen sc1", lines=1,
                     cond=lambda: "gate" in self.flags, lat=1000), prio=True)

        def kv_epilogue():
            cnd = lambda: True
            nr = t + 24
            assert self.issued(*(RX[7].jobnames + RWK[7].jobnames))
            atoms(f"""
                v_lshrrev_b32 v{a}, 1, v{vL}
                v_lshlrev_b32 v{b}, 2, v{a}
                v_sub_u32 v{b}, s{sW}, v{b}
                v_add_u32 v{b}, 8, v{b}
                v_mul_u32_u24 v{c}, 0x56, v{b}
                v_lshrrev_b32 v{c}, 8, v{c}
                v_mul_u32_u24 v{vFkv}, 104, v{c}
                v_lshl_add_u32 v{vFkv}, v{b}, 3, v{vFkv}
                v_lshl_add_u32 v{vFkv}, v{a}, 13, v{vFkv}
                v_and_b32 v{b}, 1, v{vL}
                v_lshl_add_u32 v{vFkv}, v{b}, 9, v{vFkv}
                v_add_u32 v{a}, s{sI}, v{a}
                v_mov_b32 v{b}, {BIGV:#x}
                v_cmp_gt_u32 vcc, 16, v{a} ;; v_cndmask_b32 v{vFkv}, v{b}, v{vFkv}, vcc
                v_cmp_gt_u32 vcc, 6, v{vL} ;; v_cndmask_b32 v{vFkv}, v{b}, v{vFkv}, vcc
                v_lshlrev_b32 v{vFh}, 7, v{vL}
                v_cmp_gt_u32 vcc, 16, v{vL}
                v_lshlrev_b32 v{vFo}, 8, v{vL}
                v_cmp_gt_u32 vcc, 8, v{vL}
            """)
            for u in range(4):
                atoms("\n".join(f"v_cvt_pk_bf16_f32 v{PB+4*u+k}, v{accKV+8*u+2*k}, v{accKV+8*u+2*k+1}" for k in range(4)))
                F.append((None, lambda u=u: self.flags.add(f"kvp{u}")))
                self.add(Job(f"KVst{u}", f"buffer_store_dwordx4 {V(PB+4*u,4)}, v{vLin}, {srd(S_WS)}, s{sKVs} offen offset:{1024*u} sc1",
                             cond=lambda u=u: f"kvp{u}" in self.flags, lat=1100), prio=True)
            for k in range(4):
                atoms("\n".join(f"v_dot2_f32_bf16 v{nr+u}, v{PB+4*u+k}, v{PB+4*u+k}, {'0' if k == 0 else 'v%d' % (nr+u)}" for u in range(4)))
            atoms("\n".join(f"v_cmp_nle_f32 s[{S_P+2*u}:{S_P+2*u+1}], v{nr+u}, s{sThr}" for u in range(4)))
            atoms(f"""
                s_or_b64 s[{S_P}:{S_P+1}], s[{S_P}:{S_P+1}], s[{S_P+2}:{S_P+3}]
                s_or_b64 s[{S_P+4}:{S_P+5}], s[{S_P+4}:{S_P+5}], s[{S_P+6}:{S_P+7}]
                s_or_b64 s[{S_P}:{S_P+1}], s[{S_P}:{S_P+1}], s[{S_P+4}:{S_P+5}]
            """)
            flag("kvflagv")
            for k in range(2):
                def ones(k=k):
                    for e in range(4): I(f"v_mov_b32 v{accKV+4*k+e}, v{vOv+k}")
                    I(f"ds_write_b128 v{vOa+k}, {V(accKV+4*k,4)}", region=RV)
                F.append((lambda: P.can_write(RV) and "kvflagv" in self.flags, ones))
            stn = ["Gst"] + [f"KVst{u}" for u in range(4)]
            self.add(Job("KVflag", f"buffer_store_dword v{nr}, v{vFkv}, {srd(S_WS)}, s{sFkvW} offen sc1", lines=2,
                         cond=lambda: "kvflagv" in self.flags and self.issued(*stn) and "pi_gate" in self.flags,
                         after=lambda: [self.jobs[n].ins for n in stn],
                         tmin=lambda: max(self.jobs[n].ins.done for n in stn),
                         pre=lambda: self.poll_check("gate"), lat=1000), prio=True)

        one = t + 23
        def silu(tl):
            base = accH + 16 * tl
            tm = t
            for r0 in range(0, 16, 4):
                rr = range(4)
                atoms("\n".join(f"v_mul_f32 v{tm+k}, {f2u(-LOG2E):#x}, v{base+r0+k}" for k in rr))
                atoms("\n".join(f"v_exp_f32 v{tm+k}, v{tm+k}" for k in rr))
                atoms("\n".join(f"v_add_f32 v{tm+k}, 1.0, v{tm+k}" for k in rr))
                atoms("\n".join(f"v_rcp_f32 v{tm+k}, v{tm+k}" for k in rr))
                atoms("\n".join(f"v_mul_f32 v{base+r0+k}, v{base+r0+k}, v{tm+k}" for k in rr))
                u = 2 * tl + r0 // 8
                pk = t + 4 + 4 * (u % 3)
                atoms("\n".join(f"v_cvt_pk_bf16_f32 v{pk+(r0%8)//2+k}, v{base+r0+2*k}, v{base+r0+2*k+1}" for k in range(2)))
                if r0 % 8 == 4:
                    F.append((None, lambda u=u: self.flags.add(f"hp{u}")))
                    self.add(Job(f"Hst{u}", f"buffer_store_dwordx4 {V(pk,4)}, v{vLin}, {srd(S_WS)}, s{sT1} offen offset:{1024*(u%4)} sc1",
                                 soff=(sT1, sHs, 4096 * (u // 4)), cond=lambda u=u: f"hp{u}" in self.flags, lat=1100), prio=True)
                    if u >= 2:
                        F.append((None, lambda u=u: self.force([f"Hst{u-2}"])))

        P.mark("A")
        self.stamp("p1")
        for m in range(min(LA, nall)): reads(m)
        pi_kv = cfg.get("pi_kv", n1 + 52); pc_kv = cfg.get("pc_kv", n1 + 72)
        fill_end = None
        for m in range(nall):
            cur[0] = m
            if m == n1: self.stamp("p2")
            if m == n1 + 2: kv_epilogue(); fill_end = n1 + 24
            for tl in range(3):
                if m == marks[tl] + 1:
                    silu(tl); fill_end = marks[tl + 1] + 1 if tl < 2 else nall - 4
            if m == marks[2]: self.stamp("p3")
            H = cfg.get("H1", 900) if m < n1 else cfg.get("H2", 420)
            j = self.pick(H)
            if j is not None: self.setup(j)
            I(mfma(m))
            if j is not None: self.fire(j)
            if m == cfg.get("pi_gate", n1 - 4):
                assert self.issued(*[f"GW{k}" for k in range(8)])
                self.poll_issue("gate"); self.flags.add("pi_gate")
            if m == pi_kv:
                self.force(["KVflag"]); self.poll_issue("kv")
            if m == pc_kv:
                self.poll_check("kv"); self.stamp("kvok")
                I(f"v_mov_b32 v{vFkv}, s{sSafe}")
                I(f"s_lshl_b32 s{sT2}, s{sW}, 2")
                I(f"v_add_u32 v{vZ}, s{sT2}, v{vLin}")
                I(f"ds_write_b32 v{vZ}, v{vFkv} offset:{SAFE}", region=RS)
            if m + LA < nall: reads(m + LA)
            if fill_end is not None and m < fill_end:
                n = sum(1 if callable(x[1]) else len(x[1]) for x in F)
                self.fill_some(-(-n // (fill_end - m)))
            while P.t < P.mfma_free - 8 and self.fill_some(1): pass
            if m == n1 - 1: P.mark("B")
        self.stamp("p3end")
        self.bar([RK, RV, RS])
        self.stamp("ba")
        I(f"ds_read_b128 {V(VF,4)}, v{vLin} offset:{SAFE}", region=RS)
        def kread(n):
            I(f"ds_read_b128 {V(KF+4*(n%2),4)}, v{vKr} offset:{2048*(n%9)+1024*(n//9)}", region=RK)
        def vread(n, half):
            I(f"ds_read_b128 {V(VF+8*(n%2)+4*half,4)}, v{vVr[n//9]} offset:{1280*(2*(n%9)+half)}", region=RV)
        kread(0); kread(1)
        while self.fill_some(8): self.slot(cfg.get("H2", 420))
        self.force([f"Hst{u}" for u in range(6)])
        hst = [f"Hst{u}" for u in range(6)]
        I(f"v_mov_b32 v{one}, 1")
        self.add(Job("Hflag", f"buffer_store_dword v{one}, v{vFh}, {srd(S_WS)}, s{sFhW} offen sc1", lines=4,
                     after=lambda: [self.jobs[n].ins for n in hst],
                     tmin=lambda: max(self.jobs[n].ins.done for n in hst), lat=1000), prio=True)
        for r in range(16): I(f"v_mul_f32 v{accQ+r}, {f2u(0.25*LOG2E):#x}, v{accQ+r}")
        for k in range(8): I(f"v_cvt_pk_bf16_f32 v{QF+k}, v{accQ+2*k}, v{accQ+2*k+1}")
        for k in range(4):
            for u in range(2):
                I(f"v_dot2_f32_bf16 v{t+u}, v{QF+4*u+k}, v{QF+4*u+k}, {'0' if k == 0 else 'v%d' % (t+u)}")
        I(f"s_mov_b32 s{sT2}, {f2u(14.4):#x}")
        I(f"v_lshlrev_b32 v{vGw}, 1, v{vGw}")
        def smfma(n):
            tau = n % 9
            cc = V(mF, 16) if tau == 0 else V(mD, 16) if tau == 8 else "0"
            return f"v_mfma_f32_32x32x16_bf16 {V(SB+16*(n%2),16)}, {V(KF+4*(n%2),4)}, {V(QF+4*(n//9),4)}, {cc}"
        I(f"v_min3_u32 v{VF}, v{VF}, v{VF+1}, v{VF+2}")
        I(f"v_min_u32 v{VF}, v{VF}, v{VF+3}")
        I(smfma(0))
        I(f"v_readfirstlane_b32 s{sSafe}, v{VF}")
        for u in range(2): I(f"v_cmp_nle_f32 s[{S_P+2*u}:{S_P+2*u+1}], v{t+u}, s{sT2}")
        I(f"s_or_b64 s[{S_P}:{S_P+1}], s[{S_P}:{S_P+1}], s[{S_P+2}:{S_P+3}]")
        I(f"s_cbranch_scc1 L_slow")
        I(f"s_bitcmp1_b32 s{sSafe}, 1")
        I(f"s_cbranch_scc0 L_slow")
        P.mark("C")

        def oepi(hd, pk):
            o = OB + 16 * hd
            atoms(f"v_rcp_f32 v{t+2}, v{o+8}")
            atoms("\n".join(f"v_mul_f32 v{o+r}, v{o+r}, v{t+2}" for r in range(8)))
            atoms("\n".join(f"v_cvt_pk_bf16_f32 v{pk+k}, v{o+2*k}, v{o+2*k+1}" for k in range(4)))
            flag(f"op{hd}")
            self.add(Job(f"Ost{hd}", f"buffer_store_dwordx4 {V(pk,4)}, v{vLin}, {srd(S_WS)}, s{sOs} offen offset:{1024*hd} sc1",
                         cond=lambda: f"op{hd}" in self.flags, lat=900), prio=True)

        if self.slow_jobs is None:
            self.rec = []
            def pv(n, half):
                o = V(OB + 16 * (n // 9), 16)
                cc = "0" if (n % 9 == 0 and half == 0) else o
                return f"v_mfma_f32_32x32x16_bf16 {o}, {V(VF+8*(n%2)+4*half,4)}, {V(PB+8*(n%2)+4*half,4)}, {cc}"
            HA = cfg.get("HA", 420)
            pi_h, pc_h = cfg.get("pi_h", 4), cfg.get("pc_h", 7)
            for n in range(18):
                S = SB + 16 * (n % 2); Pn = PB + 8 * (n % 2)
                e = 0; cv = 0
                if n == 11: oepi(0, t + 4)
                if n in (9,): self.stamp(f"att{n}")
                for g, cnt in enumerate((6, 5, 5)):
                    mf = None
                    if g == 0 and n + 1 < 18: mf = smfma(n + 1)
                    if g > 0 and n > 0: mf = pv(n - 1, g - 1)
                    j = self.pick(HA)
                    if j is not None: self.setup(j)
                    if mf: I(mf)
                    if g == 0 and n == pc_h: self.poll_check("h"); self.stamp("hok")
                    if g == 0 and n + 2 < 18: kread(n + 2)
                    if g > 0: vread(n, g - 1)
                    if j is not None: self.fire(j)
                    if g == 2 and n == pi_h:
                        self.force(["Hflag"]); self.poll_issue("h")
                    for _ in range(cnt):
                        I(f"v_exp_f32 v{EB+e}, v{S+e}"); e += 1
                    lim = (e - 1) // 2 if g < 2 else 8
                    self.fill_some(3)
                    while cv < lim:
                        I(f"v_cvt_pk_bf16_f32 v{Pn+cv}, v{EB+2*cv}, v{EB+2*cv+1}"); cv += 1
            I(pv(17, 0)); I(pv(17, 1))
            self.force(["Ost0"])
            self.fast_rec = self.rec; self.rec = None
        else:
            self.in_slow = True
            P.label("L_slow")
            P.drain()
            self.slow()
            self.oepi = oepi
            oepi(0, t + 4)
            while self.fill_some(8): pass
            for kind, what in self.slow_jobs:
                if kind == "job":
                    j = self.jobs[what]
                    if j.ins is None:
                        if not self.ok(j): P.errors.append(f"slow replay: {what} blocked")
                        self.setup(j); self.fire(j)
                elif kind == "pi": self.poll_issue(what)
                elif kind == "pc": self.poll_check(what)
            P.drain()
            I("s_branch L_join")
            P.mark("E")
            return
        P.mark("D")
        P.label("L_join")
        P.forget()
        self.stamp("attend")

        its = [(g, k, tl) for (g, k) in rounds for tl in range(2)]
        n3 = len(its)
        def rreads(m):
            g, k, tl = its[m]
            r = RG[g]
            if not r.fenced: self.bar([r])
            pg = r.lo // PG; bi = 0 if pg < 16 else 1 if pg < 32 else 2
            fb = WF + 4 * (m % NB)
            for q in range(2):
                I(f"ds_read_b64_tr_b16 {V(fb+2*q,2)}, v{vRr[bi][tl]} offset:{r.lo - 16*bi*PG + 4096*q + 1024*k}", region=r)
        def rmfma(m):
            g, k, tl = its[m]
            fb = V(WF + 4 * (m % NB), 4)
            if g < 11:
                a_ = 4 * g + k; acc = accB + 16 * tl; first = a_ == 0; bfr = A(4 * a_); self.force([f"H{a_}"])
            else:
                a_ = 4 * (g - 11) + k; acc = accA + 16 * tl; first = a_ == 0; bfr = A(172 + 4 * a_); self.force([f"O{a_}"])
            return f"v_mfma_f32_32x32x16_bf16 {V(acc,16)}, {fb}, {bfr}, {'0' if first else V(acc,16)}"
        LA3 = cfg.get("LA3", 5)
        for m in range(LA3): rreads(m)
        oepi(1, t + 8)
        self.add(Job("Oflag", f"buffer_store_dword v{one}, v{vFo}, {srd(S_WS)}, s{sFoW} offen sc1", lines=2,
                     cond=lambda: self.issued("Ost0", "Ost1"),
                     after=lambda: [self.jobs[n].ins for n in ("Ost0", "Ost1")],
                     tmin=lambda: self.jobs["Ost1"].ins.done, lat=1000), prio=True)
        self.fill_some(6)
        pi_o, pc_o = cfg.get("pi_o", 40), cfg.get("pc_o", 60)
        nb = 86
        expg = REX.lo
        for m in range(n3):
            cur[0] = m
            if m == nb: self.stamp("oproj")
            if m == 8:
                atoms(f"""
                    v_lshrrev_b32 v{t}, 4, v{vLin}
                    v_and_b32 v{t+1}, 31, v{t}
                    v_lshrrev_b32 v{t}, 5, v{t}
                    v_lshlrev_b32 v{t}, 4, v{t}
                    v_lshl_add_u32 v{vOut}, v{t+1}, 10, v{t}
                    v_add_u32 v{vExW}, s{sW4k}, v{vLin}
                    v_xor_b32 v{vExR}, 0x2000, v{vExW}
                """)
            if m == nb + 2:
                atoms("\n".join(f"v_mul_f32 v{accB+r}, v255, v{accB+r}" for r in range(32)))
            txt = rmfma(m)
            j = self.pick(cfg.get("H3", 420))
            if j is not None: self.setup(j)
            I(txt)
            if j is not None: self.fire(j)
            if m == pi_o:
                self.force(["Oflag"]); self.poll_issue("o")
            if m == pc_o: self.poll_check("o"); self.stamp("ook")
            if m + LA3 < n3: rreads(m + LA3)
            while P.t < P.mfma_free - 8 and self.fill_some(1): pass
        while self.fill_some(8): pass
        assert not self.main and not self.prio, [j.name for j in self.main + self.prio]
        self.stamp("epi")
        I(f"s_cmp_ge_u32 s{sW}, 2")
        P.need_waits({("v", 254), ("v", 255)})
        P.pad(Ins(f"v_add_f32 v{accA+31}, v{accA}, v{accA+16}"))
        I(f"s_cbranch_scc1 L_e1")
        st = []
        for kh in range(2):
            if kh == 1:
                I("s_branch L_e2"); P.label("L_e1")
                REX.writes = []
            snd, kp = 16 * (1 - kh), 16 * kh
            for q in range(4):
                for r in range(4 * q, 4 * q + 4):
                    I(f"v_fma_f32 v{OB+r}, v254, v{accA+snd+r}, v{accB+snd+r}")
                I(f"ds_write_b128 v{vExW}, {V(OB+4*q,4)} offset:{expg+1024*q}", region=REX)
            for r in range(16):
                I(f"v_fma_f32 v{OB+16+r}, v254, v{accA+kp+r}, v{accB+kp+r}")
        P.label("L_e2")
        P.wait(lg=0)
        P.barrier([REX])
        for q in range(4):
            I(f"ds_read_b128 {V(EB+4*q,4)}, v{vExR} offset:{expg+1024*q}", region=REX)
        for hf in range(2):
            for r in range(8 * hf, 8 * hf + 8): I(f"v_add_f32 v{OB+16+r}, v{OB+16+r}, v{EB+r}")
            for k in range(4): I(f"v_cvt_pk_bf16_f32 v{PB+4*hf+k}, v{OB+16+8*hf+2*k}, v{OB+16+8*hf+2*k+1}")
            I(f"v_permlane32_swap_b32 v{PB+4*hf}, v{PB+4*hf+2}")
            I(f"v_permlane32_swap_b32 v{PB+4*hf+1}, v{PB+4*hf+3}")
            I(f"buffer_store_dwordx4 {V(PB+4*hf,4)}, v{vOut}, {srd(S_OUT)}, s{sOut} offen offset:{32*hf}", lines=32)
        if cfg.get("debug"):
            P.wait(vm=0)
            self.stamp("end"); I(f"s_memrealtime s[{S_P}:{S_P+1}]"); P.wait(lg=0); self.stamp("end2")
            I(f"v_writelane_b32 v{vSt}, s0, 62"); I(f"v_writelane_b32 v{vSt}, s{S_P}, 63")
            self.raw(f"""
                s_lshl_b32 s{sT2}, s2, 2
                s_add_u32 s{sT2}, s{sT2}, s{sW}
                s_lshl_b32 s{sT2}, s{sT2}, 8
                s_add_u32 s{sT2}, s{sT2}, {STB:#x}
                v_lshrrev_b32 v{vLin}, 2, v{vLin}
                buffer_store_dword v{vSt}, v{vLin}, {srd(S_WS)}, s{sT2} offen
            """)
        P.mark("F")
        P.label("L_end")
        I("s_endpgm")

    def slow(self):
        P = self.P; I = self.I; t = TMP
        self.force(["Hflag"])
        sTau0, sTau, sPass, sHd, sF, sD = S_P + 16, S_P + 17, S_P + 18, S_P + 19, S_P + 20, S_P + 21
        vM, vKa, vVa, vK0, vV0 = t + 12, t + 13, t + 14, t + 15, t + 16
        CM = SB + 16; S = SB; Q = PB + 8; O = 172
        self.raw(f"""
            s_lshl_b32 s{sTau0}, s{sI}, 2
            s_add_u32 s{sTau0}, s{sTau0}, s{sW}
            s_min_u32 s{sTau0}, s{sTau0}, 8
            s_sub_u32 s{sTau0}, 8, s{sTau0}
            s_mov_b32 s{sHd}, 0
            s_lshl_b32 s{sF}, s{sTau0}, 11
            v_add_u32 v{vK0}, s{sF}, v{vKr}
            s_mul_i32 s{sF}, s{sTau0}, 2560
            v_add_u32 v{vV0}, s{sF}, v{vVr[0]}
        """)
        for k in range(4): I(f"v_mov_b32 v{Q+k}, v{QF+k}")
        P.label("Ls_head")
        I(f"v_mov_b32 v{vM}, {f2u(-3.0e38):#x}")
        for r in range(16): I(f"v_mov_b32 v{O+r}, 0")
        I(f"s_mov_b32 s{sPass}, 0")
        P.label("Ls_pass")
        I(f"s_mov_b32 s{sTau}, s{sTau0}")
        I(f"v_mov_b32 v{vKa}, v{vK0}")
        I(f"v_mov_b32 v{vVa}, v{vV0}")
        P.label("Ls_tile")
        I(f"ds_read_b128 {V(KF,4)}, v{vKa}")
        I(f"ds_read_b128 {V(VF,4)}, v{vVa}")
        I(f"ds_read_b128 {V(VF+4,4)}, v{vVa} offset:1280")
        self.raw(f"""
            s_cmp_eq_u32 s{sTau}, 0
            s_cselect_b32 s{sF}, -1, 0
            s_cmp_eq_u32 s{sTau}, 8
            s_cselect_b32 s{sD}, -1, 0
        """)
        for r in range(16):
            I(f"v_and_b32 v{CM+r}, s{sF}, v{mF+r}")
            I(f"v_and_or_b32 v{CM+r}, v{mD+r}, s{sD}, v{CM+r}")
        I(f"v_mfma_f32_32x32x16_bf16 {V(S,16)}, {V(KF,4)}, {V(Q,4)}, {V(CM,16)}")
        P.drain()
        I(f"s_cmp_eq_u32 s{sPass}, 0")
        I("s_cbranch_scc0 Ls_p1")
        for r in range(0, 16, 2): I(f"v_max3_f32 v{vM}, v{vM}, v{S+r}, v{S+r+1}")
        I("s_branch Ls_next")
        P.label("Ls_p1")
        for r in range(16): I(f"v_sub_f32 v{S+r}, v{S+r}, v{vM}")
        for r in range(16): I(f"v_exp_f32 v{EB+r}, v{S+r}")
        for k in range(8): I(f"v_cvt_pk_bf16_f32 v{PB+k}, v{EB+2*k}, v{EB+2*k+1}")
        for hf in range(2):
            I(f"v_mfma_f32_32x32x16_bf16 {V(O,16)}, {V(VF+4*hf,4)}, {V(PB+4*hf,4)}, {V(O,16)}")
        P.label("Ls_next")
        P.drain()
        self.raw(f"""
            v_add_u32 v{vKa}, 2048, v{vKa}
            v_add_u32 v{vVa}, 2560, v{vVa}
            s_add_u32 s{sTau}, s{sTau}, 1
            s_cmp_le_u32 s{sTau}, 8
            s_cbranch_scc1 Ls_tile
            s_cmp_eq_u32 s{sPass}, 0
            s_cbranch_scc0 Ls_hdone
            v_mov_b32 v{vKa}, v{vM}
            v_permlane32_swap_b32 v{vKa}, v{vM}
            v_max_f32 v{vM}, v{vM}, v{vKa}
            s_mov_b32 s{sPass}, 1
            s_branch Ls_pass
        """)
        P.label("Ls_hdone")
        I(f"s_cmp_eq_u32 s{sHd}, 0")
        I("s_cbranch_scc0 Ls_done")
        for r in range(16): I(f"v_mov_b32 v{OB+r}, v{O+r}")
        for k in range(4): I(f"v_mov_b32 v{Q+k}, v{QF+4+k}")
        self.raw(f"""
            v_add_u32 v{vK0}, 1024, v{vK0}
            v_sub_u32 v{vV0}, v{vV0}, v{vVr[0]}
            v_add_u32 v{vV0}, v{vV0}, v{vVr[1]}
            s_mov_b32 s{sHd}, 1
            s_branch Ls_head
        """)
        P.label("Ls_done")
        for r in range(16): I(f"v_mov_b32 v{OB+16+r}, v{O+r}")
        P.drain()


HEADER = open(f"cdna_kernels/{NAME}.s.ref").read().split("; Override launch")[0]


def generate(cfg, verbose=False):
    gK = Gen("K", dict(cfg)); gK.build()
    gV = Gen("V", dict(cfg)); gV.build()
    gS = Gen("K", dict(cfg), slow_jobs=gK.fast_rec); gS.build()
    for g in (gK, gV, gS):
        if g.P.errors:
            print("\n".join(g.P.errors[:30])); raise SystemExit("generator errors")
    K, Vp, S = gK.P, gV.P, gS.P
    assert K.text(0, K.marks["A"]) == Vp.text(0, Vp.marks["A"])
    assert K.text(K.marks["B"]) == Vp.text(Vp.marks["B"])
    assert K.text(0, K.marks["C"]) == S.text(0, S.marks["C"])
    body = [K.text(0, K.marks["A"]),
            f"    s_bitcmp1_b32 s{sJ}, 0", "    s_cbranch_scc1 L_p1v",
            K.text(K.marks["A"], K.marks["B"]), "    s_branch L_p1e", "L_p1v:",
            Vp.text(Vp.marks["A"], Vp.marks["B"]), "L_p1e:",
            K.text(K.marks["B"]),
            S.text(S.marks["C"], S.marks["E"])]
    body += [x for (sl, x) in gK.ool] + [x for (sl, x) in gS.ool if sl]
    if verbose:
        for n, tt, pf in K.log: print(f"{n:8s} t={tt:7.0f} pipe_free={pf:7.0f}")
        from collections import Counter
        print(Counter(x.cls for x in K.out))
        print("nop states:", sum(x.ws for x in K.out if x.cls == "nop"))
    cfg["stamps"] = gK.cfg.get("stamps", {})
    return HEADER + f"""; @launch grid=(256,1,1) block=(256,1,1) lds=163840
.amdgcn_target "amdgcn-amd-amdhsa--gfx950"
.text
.globl {NAME}_kernel
.p2align 8
.type {NAME}_kernel,@function
{NAME}_kernel:
""" + "\n".join(body) + f"""
.section .rodata,"a"
.p2align 6
.amdhsa_kernel {NAME}_kernel
  .amdhsa_next_free_vgpr 512
  .amdhsa_next_free_sgpr 102
  .amdhsa_accum_offset 256
  .amdhsa_group_segment_fixed_size 0
  .amdhsa_kernarg_size 80
  .amdhsa_user_sgpr_count 2
  .amdhsa_user_sgpr_kernarg_segment_ptr 1
  .amdhsa_system_sgpr_workgroup_id_x 1
.end_amdhsa_kernel
"""


if __name__ == "__main__":
    import json
    cfg = {}
    out = f"cdna_kernels/{NAME}.s"
    for a in sys.argv[1:]:
        k, v = a.split("=", 1)
        if k == "out": out = v
        else: cfg[k] = json.loads(v)
    txt = generate(cfg, verbose=True)
    open(out, "w").write(txt)
    json.dump(cfg["stamps"], open(out + ".json", "w"))
    print("written", out, len(txt))
```

```python
import sys, json
sys.path.insert(0, "tools")
import gen
N = gen.NAME
def probe(kind, k=0, k0=0):
    L = ["""
.globl probe_kernel
.p2align 8
.type probe_kernel,@function
probe_kernel:
    s_cmp_lg_u32 s2, 0
    s_cbranch_scc1 Lq_end
    s_load_dwordx2 s[4:5], s[0:1], 72
    s_mov_b32 s6, 0x1000000
    s_mov_b32 s7, 0x20000
    v_lshlrev_b32 v1, 12, v0
    s_mov_b32 s8, 0xE00000
    s_waitcnt lgkmcnt(0)"""]
    a, b = (62, 63) if kind == "rt" else (k0, k)
    for n in range(16):
        L.append(f"    buffer_load_dword v{10+n}, v1, s[4:7], s8 offen offset:{256*n+4*a}")
        L.append(f"    buffer_load_dword v{30+n}, v1, s[4:7], s8 offen offset:{256*n+4*b}")
    L.append("    s_waitcnt vmcnt(0)")
    if kind == "rt":
        L.append("    v_readfirstlane_b32 s20, v10\n    s_sub_u32 s20, s20, 0x100000")
        for n in range(16):
            L.append(f"    v_subrev_u32 v{10+n}, s20, v{10+n}\n    v_subrev_u32 v{30+n}, s20, v{30+n}")
        for n in range(1, 16):
            L.append(f"    v_min_u32 v10, v10, v{10+n}\n    v_max_u32 v30, v30, v{30+n}")
        L.append("    s_mov_b32 s10, -1\n    s_mov_b32 s11, 0\n    s_nop 4")
        for l in range(64):
            L.append(f"    v_readlane_b32 s12, v10, {l}\n    v_readlane_b32 s13, v30, {l}\n    s_nop 1\n    s_min_u32 s10, s10, s12\n    s_max_u32 s11, s11, s13")
        L.append("    s_sub_u32 s10, s11, s10\n    s_lshl_b32 s10, s10, 2")
    else:
        for n in range(16): L.append(f"    v_sub_u32 v{30+n}, v{30+n}, v{10+n}")
        op = {"mean": "v_add_u32", "max": "v_max_u32", "min": "v_min_u32"}[kind]
        sop = {"mean": "s_add_u32", "max": "s_max_u32", "min": "s_min_u32"}[kind]
        for n in range(1, 16): L.append(f"    {op} v30, v30, v{30+n}")
        L.append(f"    s_mov_b32 s10, {-1 if kind == 'min' else 0}\n    s_nop 4")
        for l in range(64):
            L.append(f"    v_readlane_b32 s13, v30, {l}\n    s_nop 1\n    {sop} s10, s10, s13")
        L.append(f"    s_lshr_b32 s10, s10, {12 if kind == 'mean' else 2}")
    L.append("""    s_min_u32 s10, s10, 50000
    s_memrealtime s[14:15]
    s_waitcnt lgkmcnt(0)
Lq_spin:
    s_memrealtime s[16:17]
    s_waitcnt lgkmcnt(0)
    s_sub_u32 s16, s16, s14
    s_cmp_lt_u32 s16, s10
    s_cbranch_scc1 Lq_spin
Lq_end:
    s_endpgm
""")
    return "\n".join(L)
DESC = """
.p2align 6
.amdhsa_kernel probe_kernel
  .amdhsa_next_free_vgpr 64
  .amdhsa_next_free_sgpr 102
  .amdhsa_accum_offset 64
  .amdhsa_group_segment_fixed_size 0
  .amdhsa_kernarg_size 80
  .amdhsa_user_sgpr_count 2
  .amdhsa_user_sgpr_kernarg_segment_ptr 1
  .amdhsa_system_sgpr_workgroup_id_x 1
.end_amdhsa_kernel
"""
def make(cfg, spec, out, nmain=1):
    cfg = dict(cfg); cfg["debug"] = 1
    s = gen.generate(cfg)
    names = {v: k for k, v in cfg["stamps"].items()}
    l = "; @launch grid=(256,1,1) block=(256,1,1) lds=163840\n"
    s = s.replace(l, f"; @launch kernel={N}_kernel grid=(256,1,1) block=(256,1,1) lds=163840\n" * nmain + "; @launch kernel=probe_kernel grid=(1,1,1) block=(64,1,1) lds=0\n")
    kind, *r = spec.split(":")
    if kind == "zero": p = probe("rt").replace("s_min_u32 s10, s10, 50000", "s_mov_b32 s10, 0")
    elif kind == "rt": p = probe("rt")
    else: p = probe(kind, names[r[0]], names[r[1]] if len(r) > 1 else 0)
    s = s.replace('.section .rodata,"a"', p + '.section .rodata,"a"') + DESC
    open(out, "w").write(s)
if __name__ == "__main__":
    cfg = {}; specs = []
    for a in sys.argv[1:]:
        if "=" in a: k, v = a.split("=", 1); cfg[k] = json.loads(v)
        else: specs.append(a)
    for n, sp in enumerate(specs): make(cfg, sp, f"p{n}.s")
```

```python
import re

TRANS = ("v_exp_", "v_log_", "v_rcp_", "v_rsq_", "v_sqrt_", "v_sin_", "v_cos_")
SCC_DEF = ("s_add_", "s_sub_", "s_addc_", "s_subb_", "s_and_", "s_or_", "s_xor_", "s_andn2_", "s_orn2_",
           "s_lshl_", "s_lshr_", "s_ashr_", "s_min_", "s_max_", "s_not_", "s_bfe_", "s_cmp", "s_bitcmp",
           "s_addk_", "s_abs_", "s_lshl1_", "s_lshl2_", "s_lshl3_", "s_lshl4_")
SCC_USE = ("s_addc_", "s_subb_", "s_cselect_", "s_cbranch_scc")

_tok = re.compile(r"^-?(?:abs\()?([vas])(?:\[(\d+):(\d+)\]|(\d+))\)?$")


def regs_of(tok):
    tok = tok.strip()
    if tok in ("vcc", "vcc_lo", "vcc_hi"):
        return [("x", "vcc")]
    if tok in ("exec", "exec_lo", "exec_hi"):
        return [("x", "exec")]
    if tok == "m0":
        return [("x", "m0")]
    m = _tok.match(tok)
    if not m:
        return []
    k = m.group(1)
    if m.group(4) is not None:
        return [(k, int(m.group(4)))]
    return [(k, n) for n in range(int(m.group(2)), int(m.group(3)) + 1)]


class Ins:
    __slots__ = ("text", "op", "ops", "defs", "uses", "cls", "ws", "meta", "srcC", "srcAB", "dpp", "done", "nl", "end")

    def __init__(self, text, **meta):
        self.text = text
        self.meta = meta
        self.done = 0
        body = text.split(";")[0].strip()
        self.dpp = False
        self.srcC = set()
        self.srcAB = set()
        self.ws = 1
        if body.endswith(":") or body.startswith("."):
            self.op = "label"; self.ops = []; self.defs = set(); self.uses = set(); self.cls = "label"; self.ws = 0
            return
        parts = body.split(None, 1)
        op = parts[0]
        self.op = op
        rest = parts[1] if len(parts) > 1 else ""
        ops = [o.strip() for o in rest.split(",")] if rest else []
        mods = ""
        if ops:
            sp = ops[-1].split(None, 1)
            ops[-1] = sp[0]
            mods = sp[1] if len(sp) > 1 else ""
        self.ops = ops
        R = [regs_of(o) for o in ops]
        allr = lambda L: set(x for r in L for x in r)
        d, u = set(), set()
        if op.startswith("v_mfma"):
            cls = "mfma"; d = allr(R[:1]); u = allr(R[1:]); self.srcC = allr(R[3:4]); self.srcAB = allr(R[1:3])
        elif op.startswith("v_"):
            cls = "valu"
            if op.startswith(TRANS): cls = "trans"
            if op.startswith("v_dot"): cls = "dot"
            if op.startswith("v_permlane"):
                d = allr(R); u = allr(R)
            elif op.startswith(("v_fmac", "v_dot2c", "v_writelane")):
                d = allr(R[:1]); u = allr(R)
            elif op.startswith("v_nop"):
                pass
            else:
                d = allr(R[:1]); u = allr(R[1:])
            if "row_" in mods or "quad_perm" in mods or "_dpp" in op:
                self.dpp = True; u |= d
            if op.startswith("v_dot"):
                self.srcC = allr(R[3:4]) if len(R) > 3 else allr(R[:1])
                self.srcAB = allr(R[1:3])
        elif op.startswith("ds_read"):
            cls = "dsr"; d = allr(R[:1]); u = allr(R[1:])
        elif op.startswith("ds_write"):
            cls = "dsw"; u = allr(R)
        elif op.startswith(("buffer_load", "global_load")):
            if re.search(r"\blds\b", mods):
                cls = "dma"; u = allr(R) | {("x", "m0")}
            else:
                cls = "vld"; d = allr(R[:1]); u = allr(R[1:])
        elif op.startswith(("buffer_store", "global_store")):
            cls = "vst"; u = allr(R)
        elif op.startswith(("s_load", "s_memtime", "s_memrealtime")):
            cls = "smem"; d = allr(R[:1]); u = allr(R[1:])
        elif op == "s_waitcnt":
            cls = "wait"
        elif op == "s_barrier":
            cls = "barrier"
        elif op == "s_nop":
            cls = "nop"; self.ws = int(ops[0], 0) + 1
        elif op.startswith(("s_branch", "s_cbranch", "s_endpgm", "s_setprio", "s_sleep")):
            cls = "ctl"
            if "vcc" in op: u.add(("x", "vcc"))
            if "exec" in op: u.add(("x", "exec"))
        elif op.startswith("s_"):
            cls = "salu"
            if op.startswith(("s_cmp", "s_bitcmp")):
                u = allr(R)
            else:
                d = allr(R[:1]); u = allr(R[1:])
                if op.startswith(("s_addk", "s_mulk")): u |= d
        else:
            raise ValueError("unknown op " + text)
        if op.startswith(SCC_DEF): d.add(("x", "scc"))
        if op.startswith(SCC_USE): u.add(("x", "scc"))
        self.cls = cls; self.defs = d; self.uses = u


VALU = ("valu", "trans", "dot")
VMEM = ("dma", "vld", "vst")


def is_s(r): return r[0] == "s" or r == ("x", "vcc")
def is_v(r): return r[0] in ("v", "a")


def hazard(p, c):
    n = 0
    pv = p.cls in VALU
    cv = c.cls in VALU
    if pv:
        vd = {r for r in p.defs if is_v(r)}
        sd = {r for r in p.defs if is_s(r)}
        if vd:
            if c.cls == "mfma" and vd & c.uses: n = max(n, 2)
            if p.cls == "trans" and (vd & c.uses) and c.cls != "trans": n = max(n, 1)
            if p.cls == "trans" and (vd & c.uses) and c.cls == "trans": n = max(n, 1)
            if c.op.startswith(("v_readfirstlane", "v_readlane")) and vd & c.uses: n = max(n, 1)
            if cv and c.dpp and vd & c.uses: n = max(n, 2)
            if c.op.startswith("v_permlane") and vd & c.uses: n = max(n, 2)
            if p.cls == "dot":
                if c.op == p.op:
                    if vd & c.srcAB: n = max(n, 3)
                elif vd & (c.uses | c.defs): n = max(n, 3)
        if sd:
            if cv and sd & c.uses: n = max(n, 4 if c.op.startswith(("v_readlane", "v_writelane")) else 2)
            if c.cls in VMEM + ("smem",) and sd & c.uses: n = max(n, 5)
            if c.cls in ("salu", "ctl") and sd & c.uses: n = max(n, 1)
        if ("x", "exec") in p.defs: n = max(n, 5)
    if p.cls == "mfma":
        D = p.defs
        if c.cls == "mfma":
            if D & c.srcAB: n = max(n, 12)
            if D & c.srcC and D != c.srcC: n = max(n, 10)
        elif cv:
            if D & (c.uses | c.defs): n = max(n, 12)
            if p.srcC & c.defs: n = max(n, 7)
        elif c.cls in VMEM + ("dsr", "dsw"):
            if D & (c.uses | c.defs): n = max(n, 12)
            if p.srcC & c.defs: n = max(n, 7)
    if p.cls == "salu" and ("x", "m0") in p.defs and c.cls == "dma": n = max(n, 1)
    if p.cls in ("vst", "dsw") and c.defs:
        data = set(regs_of(p.ops[0])) if p.cls == "vst" else set(regs_of(p.ops[1]))
        if len(data) >= 3 and data & c.defs: n = max(n, 2)
    return n


class Region:
    def __init__(self, name, lo, size, private=False):
        self.name = name; self.lo = lo; self.hi = lo + size; self.private = private
        self.writes = []
        self.reads = []
        self.nwrites_expected = None
        self.nreads_expected = None

    def overlaps(self, o): return self.lo < o.hi and o.lo < self.hi


class Prog:
    def __init__(self, lat=600, t0=0):
        self.out = []
        self.vmq = []
        self.lgq = []
        self.smem = []
        self.t = t0
        self.mfma_free = 0
        self.pipe_free = 0
        self.fifo = []; self.cap = 320; self.qd = 4; self.fab_free = 0; self.stall = 0
        self.lat = lat
        self.regions = []
        self.nbar = 0
        self.m0 = None
        self.sval = {}
        self.marks = {}
        self.errors = []
        self.log = []
        self.prev_cls = None

    def _append(self, ins):
        self.out.append(ins)
        c = ins.cls
        if c == "label":
            return
        dt = 4
        if c == "nop": dt = 4 * ins.ws
        elif c == "trans": dt = 8
        elif c == "mfma":
            st = max(self.t, self.mfma_free); self.mfma_free = st + 32; self.t = st; dt = 8
        elif c in ("dsr", "dsw"):
            dt = 4 if self.prev_cls in ("mfma", "dsr") else 8
            if c == "dsw": dt = 16
            ins.done = self.t + 90
        elif c in VMEM:
            dt = 10
            self._vmem(ins, True)
        elif c == "smem":
            ins.done = self.t + ins.meta.get("lat", 200)
        elif c == "barrier":
            dt = 24
        self.t += dt
        self.prev_cls = c

    def _vmem(self, ins, commit):
        lines = 4 * ins.meta.get("lines", 8)
        cost = max(lines * 2.1, 4 * ins.meta.get("mincost", 16.5))
        t = self.t
        if len(self.fifo) >= self.qd: t = max(t, self.fifo[-self.qd].end)
        st = max(t + 20, self.pipe_free)
        acc = lines
        for x in reversed(self.fifo):
            if x.done <= st: break
            acc += x.nl
            if acc > self.cap: st = x.done; break
        if not commit: return t, st
        self.stall += t - self.t
        self.t = t
        ins.nl = lines; ins.end = st + cost
        self.pipe_free = ins.end
        lat = ins.meta.get("lat", self.lat)
        ready = ins.end + lat
        miss = ins.meta.get("miss", 0)
        if miss:
            self.fab_free = max(self.fab_free, st) + lines * miss * 8.9
            ready = max(ready, self.fab_free + lat)
        prev = self.fifo[-1].done if self.fifo else 0
        ins.done = max(ready, prev) if ins.cls == "vst" else max(ready, prev + cost)
        self.fifo.append(ins)

    def vm_delay(self, lines):
        x = Ins("s_nop 0", lines=lines)
        t, st = self._vmem(x, False)
        return t - self.t, st - self.t

    def _retire(self, ins):
        ins.meta["complete_bar"] = self.nbar

    def wait(self, vm=None, lg=None):
        parts = []
        if vm is not None:
            vm = min(vm, 63)
            k = len(self.vmq) - vm
            if k > 0:
                for x in self.vmq[:k]:
                    self.t = max(self.t, x.done); self._retire(x)
                self.vmq = self.vmq[k:]
            parts.append(f"vmcnt({vm})")
        if lg is not None:
            lg = min(lg, 15)
            k = len(self.lgq) - lg
            if k > 0:
                for x in self.lgq[:k]:
                    self.t = max(self.t, x.done); self._retire(x)
                self.lgq = self.lgq[k:]
            if lg == 0:
                for x in self.smem: self.t = max(self.t, x.done)
                self.smem = []
            parts.append(f"lgkmcnt({lg})")
        self._append(Ins("s_waitcnt " + " ".join(parts)))

    def _need(self, q, pred):
        idx = -1
        for k, x in enumerate(q):
            if pred(x): idx = k
        return None if idx < 0 else len(q) - 1 - idx

    def need_waits(self, regs, vm_ins=(), lg_ins=()):
        vm = self._need(self.vmq, lambda x: bool(x.defs & regs) or x in vm_ins)
        lg = self._need(self.lgq, lambda x: bool(x.defs & regs) or x in lg_ins)
        if any(x.defs & regs for x in self.smem): lg = 0
        if vm is not None or lg is not None:
            self.wait(vm, lg)

    def pad(self, ins):
        dist = 0; need = 0
        for p in reversed(self.out):
            if dist >= 20: break
            h = hazard(p, ins)
            if h - dist > need: need = h - dist
            dist += p.ws
        while need > 0:
            k = min(need, 16)
            self._append(Ins(f"s_nop {k-1}")); need -= k

    def I(self, text, after=(), **meta):
        ins = Ins(text, **meta)
        if ins.cls == "label":
            self._append(ins); return ins
        regs = ins.uses | ins.defs
        self.need_waits(regs, vm_ins=after, lg_ins=after)
        reg = meta.get("region")
        if reg is not None: self._lds_check(ins, reg)
        self.pad(ins)
        self._append(ins)
        if ins.cls in VMEM: self.vmq.append(ins)
        if ins.cls in ("dsr", "dsw"): self.lgq.append(ins)
        if ins.cls == "smem" and not meta.get("untracked"): self.smem.append(ins)
        if ins.cls == "barrier": self.nbar += 1
        for r in ins.defs:
            if r == ("x", "m0"): self.m0 = None
            if r[0] == "s":
                self.sval.pop(r[1], None)
                for k in [k for k, v in self.sval.items() if v[0] == r[1]]: self.sval.pop(k)
                if self.m0 is not None and self.m0[0] == r[1]: self.m0 = None
        return ins

    def raw(self, text):
        for l in text.strip("\n").split("\n"):
            l = l.strip()
            if l: self.I(l)

    def label(self, name):
        self.I(name + ":")

    def forget(self):
        self.m0 = None; self.sval = {}

    def drain(self):
        self.wait(0, 0)
        self._append(Ins("s_nop 15")); self._append(Ins("s_nop 3"))

    def region(self, name, lo, size, private=False, nreads=None):
        r = Region(name, lo, size, private)
        r.nreads_expected = nreads
        assert r.hi <= 163840, name
        r.older = [o for o in self.regions if o.overlaps(r)]
        self.regions.append(r)
        return r

    def _done_and_fenced(self, x, need_bar):
        cb = x.meta.get("complete_bar")
        if cb is None: return False
        return (self.nbar > cb) if need_bar else True

    def can_write(self, r):
        for o in r.older:
            if o.nreads_expected is not None and len(o.reads) < o.nreads_expected: return False
            same = r.private and o.private and r.lo == o.lo and r.hi == o.hi
            for x in o.reads + o.writes:
                if not self._done_and_fenced(x, not same): return False
        return True

    def _lds_check(self, ins, r):
        if ins.cls in ("dma", "dsw"):
            if not self.can_write(r): self.errors.append(f"WAR on {r.name}: {ins.text}")
            if r.reads and not ins.meta.get("rewrite"): self.errors.append(f"write after read inside {r.name}: {ins.text}")
            r.writes.append(ins)
        else:
            if r.nwrites_expected is not None and len(r.writes) < r.nwrites_expected:
                self.errors.append(f"read of incomplete {r.name}: {ins.text}")
            pend = [x for x in r.writes if x.meta.get("complete_bar") is None]
            if r.private and pend:
                self.need_waits(set(), vm_ins=pend, lg_ins=pend)
            for x in r.writes:
                if not self._done_and_fenced(x, not r.private):
                    self.errors.append(f"RAW on {r.name}: {ins.text}")
                    break
            for o in self.regions:
                if o is not r and r in getattr(o, "older", []) and o.writes:
                    self.errors.append(f"read of overwritten {r.name} (by {o.name}): {ins.text}")
            r.reads.append(ins)

    def barrier(self, needs=()):
        pend = [x for r in needs for x in r.writes if x.meta.get("complete_bar") is None]
        for r in needs:
            if r.nwrites_expected is not None and len(r.writes) < r.nwrites_expected:
                self.errors.append(f"barrier before all writes of {r.name} were issued")
        self.I("s_barrier", after=pend)

    def eta(self, needs):
        return max([x.done for r in needs for x in r.writes] + [0])

    def set_m0(self, base, const):
        if self.m0 == (base, const): return
        if base is None: self.I(f"s_mov_b32 m0, {const:#x}")
        else: self.I(f"s_add_u32 m0, s{base}, {const:#x}")
        self.m0 = (base, const)

    def set_s(self, sreg, base, const):
        if self.sval.get(sreg) == (base, const): return
        if base is None: self.I(f"s_mov_b32 s{sreg}, {const:#x}")
        else: self.I(f"s_add_u32 s{sreg}, s{base}, {const:#x}")
        self.sval[sreg] = (base, const)

    def set_x(self, sreg, key, ops):
        if self.sval.get(sreg) == (None, key): return
        for o in ops: self.I(o)
        self.sval[sreg] = (None, key)

    def mark(self, name):
        self.marks[name] = len(self.out)
        self.log.append((name, self.t, self.pipe_free, self.stall))

    def text(self, a=0, b=None):
        L = []
        for x in self.out[a:b]:
            L.append(x.text if x.cls == "label" else "    " + x.text)
        return "\n".join(L)
```

```python
import sys, struct
sys.path.insert(0, "tools")
from dsl import *

NAME = "gated_mix__sliding_block__dense_activation_silu__prompt"
def f2u(x): return struct.unpack("<I", struct.pack("<f", x))[0]
LOG2E = 1.4426950408889634
NEG = f2u(-1e30)
PG = 4096

MB = 0x420000
GP = 0x8000
KVB = 0x10000
AB = 0x500000
STB = 0xE00000
WSN = 0x1000000
BIGV = 0x2000000

S_X, S_WQKV, S_W1, S_W2, S_WO, S_WS, S_OUT, S_GW, S_DBG = 4, 8, 12, 16, 20, 24, 28, 32, 36
S_P = 40
(sW, sI, sJ, sW2k, sW3k, sW4k, sWK, sWV, sT0, sT1, sKVl0, sKVl1, sKVl2, sKVs, sHs, sOs, sHl, sOl,
 sFkvW, sFkvR, sFhW, sFhR, sFoW, sGs, sGl, sOut, sTmo, sThr, sSafe, sR, sZ, sRw2, sRwo, sT2) = range(64, 98)
sX12, sX16 = 1, 3
S_ST = 98
def srd(b): return f"s[{b}:{b+3}]"

vLin, vZ = 1, 2
vXd = [3, 4, 5, 6]; vWK = [7, 8]; vW1d = [9, 10, 11]; vWQ = [12, 13]; vRd = [14, 15, 16, 17]
vXr = [18, 19, 20, 21]; vGx = 22; vWr = [23, 24]; vW1r = [25, 26]; vWQr = [27, 28]; vKr = 29; vVr = [30, 31]
vRr = [[32, 33], [34, 35], [36, 37]]; vGo = 38; vGw = 39
mD, mF = 40, 56
WF = 72
NB = 9
accKV = 108; accH = 140; accQ = 188; QF = 204; PB = 212
GX, GW_ = 212, 220
TMP = 228
KF = 72; VF = 80; SB = 108; OB = 140; EB = 188
accB = 40; accA = 108; vG = 204; vOut = 3; vExW = 4; vExR = 5
vSt = 0
vFkv, vFh, vFo = 6, 7, 8
SAFE = 30720
def V(b, n=1): return f"v{b}" if n == 1 else f"v[{b}:{b+n-1}]"
def A(b, n=4): return f"a[{b}:{b+n-1}]"


class Job:
    def __init__(self, name, text, m0=None, soff=None, region=None, lines=8, cond=None, after=None, tmin=None,
                 pre=None, lat=None, miss=0):
        self.miss = miss
        self.name = name; self.text = text; self.m0 = m0; self.soff = soff; self.region = region
        self.lines = lines; self.cond = cond; self.after = after; self.tmin = tmin; self.pre = pre; self.lat = lat
        self.ins = None


class Gen:
    def __init__(self, kv, cfg, slow_jobs=None):
        self.kv = kv
        self.cfg = cfg
        self.slow_jobs = slow_jobs
        self.P = Prog(lat=cfg.get("lat", 600))
        self.main = []; self.prio = []; self.jobs = {}
        self.rec = None
        self.flags = set()
        self.nst = 0
        self.fill = []
        self.lab = 0
        self.ool = []
        self.clock = -1
        self.P.cap = cfg.get("cap", 320); self.P.qd = cfg.get("qd", 4)

    def I(self, *a, **k): return self.P.I(*a, **k)
    def raw(self, t): self.P.raw(t)

    def stamp(self, name):
        self.P.mark(name)
        if not self.cfg.get("debug"): return
        k = self.nst
        if k > 0:
            self.I(f"v_writelane_b32 v{vSt}, s{S_ST + 2*((k-1) & 1)}, {k-1}")
        self.I(f"s_memtime s[{S_ST + 2*(k & 1)}:{S_ST + 2*(k & 1) + 1}]", untracked=True)
        self.cfg.setdefault("stamps", {})[k] = name
        self.nst += 1

    def add(self, job, prio=False):
        (self.prio if prio else self.main).append(job); self.jobs[job.name] = job
        return job

    def ok(self, j):
        rel = self.cfg.get("rel", {}).get(j.name.split("_")[0])
        if rel is not None and self.clock < rel: return False
        if j.region is not None and not self.P.can_write(j.region): return False
        if j.cond is not None and not j.cond(): return False
        return True

    def pick(self, H, stall_ok=0):
        P = self.P
        for j in self.prio:
            if self.ok(j) and (j.tmin is None or P.t >= j.tmin()) and P.vm_delay(j.lines)[0] <= self.cfg.get("pstall", 20): return j
        for j in self.main[:self.cfg.get("window", 5)]:
            if self.ok(j):
                stall, d = P.vm_delay(j.lines)
                return j if stall <= stall_ok and d < H else None
        return None

    def setup(self, j):
        if j.pre is not None: j.pre()
        if j.soff is not None:
            if isinstance(j.soff[2], list): self.P.set_x(*j.soff)
            else: self.P.set_s(*j.soff)
        if j.m0 is not None: self.P.set_m0(*j.m0)

    def fire(self, j):
        meta = dict(lines=j.lines, miss=j.miss)
        if j.region is not None: meta["region"] = j.region
        if j.lat is not None: meta["lat"] = j.lat
        j.ins = self.I(j.text, after=(j.after() if j.after else ()), **meta)
        j.t = self.P.t
        (self.prio if j in self.prio else self.main).remove(j)
        if self.rec is not None: self.rec.append(("job", j.name))

    def slot(self, H, stall_ok=0):
        j = self.pick(H, stall_ok)
        if j is not None:
            self.setup(j); self.fire(j)
        return j

    def force(self, names):
        for n in names:
            j = self.jobs[n]
            if j.ins is not None: continue
            if j in self.main:
                for o in list(self.main[:self.main.index(j)]):
                    if self.ok(o): self.setup(o); self.fire(o)
            if not self.ok(j): self.P.errors.append(f"forced job {n} is blocked")
            self.setup(j); self.fire(j)

    def issued(self, *names): return all(self.jobs[n].ins is not None for n in names)
    def landed(self, *names): return all(self.jobs[n].ins is not None and self.jobs[n].ins.done <= self.P.t for n in names)

    def bar(self, regs):
        P = self.P
        for r in regs: self.force(r.jobnames)
        while P.eta(regs) > P.t + 60:
            if self.slot(self.cfg.get("Hwait", 300)) is None:
                if not self.fill_some(4):
                    if self.slot(10000, P.eta(regs) - P.t - 40) is None: break
        P.barrier(regs)
        for r in regs: r.fenced = True

    def fill_some(self, n):
        done = 0
        while done < n:
            for k, (cond, atom) in enumerate(self.fill):
                if cond is None or cond():
                    self.fill.pop(k)
                    if callable(atom): atom(); done += 1
                    else:
                        for x in atom: self.I(x)
                        done += len(atom)
                    break
            else:
                break
        return done

    def poll_text(self, kind, retry=False):
        ws = f"s[{S_WS}:{S_WS+1}]"
        if kind == "kv": return [f"s_load_dwordx8 s[{S_P}:{S_P+7}], {ws}, s{sFkvR} glc"]
        if kind == "h": return [f"s_load_dwordx16 s[{S_P}:{S_P+15}], {ws}, s{sFhR} glc"]
        if kind == "o": return [f"s_load_dwordx8 s[{S_P}:{S_P+7}], {ws}, s{sFhR} offset:64 glc"]
        if kind == "gate": return [f"s_load_dwordx4 s[{S_GW}:{S_GW+3}], s[{S_DBG}:{S_DBG+1}], 0x0" + (" glc" if retry else "")]

    def poll_issue(self, kind):
        for x in self.poll_text(kind): self.I(x, lat=self.cfg.get("latpoll", 700))
        if self.rec is not None: self.rec.append(("pi", kind))

    def poll_check(self, kind):
        self.lab += 1
        tag = f"{kind}{self.lab}" + ("s" if self.slow_jobs is not None and self.in_slow else "")
        self.P.label(f"Lp_{tag}")
        self.P.wait(lg=0)
        n = {"kv": 3, "h": 8, "o": 4, "gate": 2}[kind]
        B = S_GW if kind == "gate" else S_P
        if kind == "kv":
            for k in range(3):
                self.I(f"s_cmp_eq_u32 s{sKVl0+k}, {WSN:#x}")
                self.I(f"s_cselect_b64 s[{B+2*k}:{B+2*k+1}], -1, s[{B+2*k}:{B+2*k+1}]")
        for k in range(1, n):
            self.I(f"s_and_b64 s[{B}:{B+1}], s[{B}:{B+1}], s[{B+2*k}:{B+2*k+1}]")
        r = sSafe if kind == "kv" else B
        self.I(f"s_and_b32 s{r}, s{B}, s{B+1}")
        if kind == "gate": self.I(f"s_cmp_eq_u32 s{r}, -1")
        else: self.I(f"s_bitcmp1_b32 s{r}, 0")
        self.I(f"s_cbranch_scc0 Lr_{tag}")
        self.P.label(f"Ld_{tag}")
        L = [f"Lr_{tag}:"] + ["    " + x for x in self.poll_text(kind, True)]
        L += [f"    s_sub_u32 s{sTmo}, s{sTmo}, 1", f"    s_cbranch_scc0 Lp_{tag}", f"    s_mov_b32 s{sTmo}, 0",
              "    s_waitcnt lgkmcnt(0)", f"    s_branch Ld_{tag}"]
        self.ool.append((self.in_slow, "\n".join(L)))
        self.flags.add("poll_" + kind)
        if self.rec is not None: self.rec.append(("pc", kind))

    def build(self):
        P = self.P; cfg = self.cfg; I = self.I
        self.in_slow = False
        def reg(name, page, size, jobs, private=False, nreads=None, nwrites=None):
            r = P.region(name, page * PG, size, private, nreads); r.jobnames = jobs; r.fenced = False
            r.nwrites_expected = nwrites if nwrites is not None else len(jobs)
            return r
        xpage = [0, 4, 8, 12, 16, 20, 0, 4]
        RX, RWK = [], []
        for s in range(8):
            RX.append(reg(f"X{s}", xpage[s], 4 * PG, [f"X{s}_{q}" for q in range(4)], True, 4))
        for s in range(8):
            RWK.append(reg(f"WK{s}", 24 + 2 * s, 2 * PG, [f"WK{s}_{u}" for u in range(2)], False, 16))
        w1page = [24, 27, 8, 11, 14, 17, 30, 33]
        RW1 = [reg(f"W1{s}", w1page[s], 3 * PG, [f"W1{s}_{t}" for t in range(3)], False, 24) for s in range(8)]
        wqpage = [20, 22, 36, 38]
        RWQ = [reg(f"WQ{s}", wqpage[s], 2 * PG, [f"WQ{s}_{u}" for u in range(2)], False, 16) for s in range(4)]
        RK = reg("K", 24, 6 * PG, [f"K{b}_{h}" for b in range(3) for h in range(2)], False, 18)
        RV = reg("V", 0, 24 * 1280, [f"V{b}_{h}" for b in range(3) for h in range(2)], False, 36, nwrites=8)
        RS = P.region("SAFE", SAFE, 1024, False, 1); RS.jobnames = []; RS.fenced = False; RS.nwrites_expected = 1
        rgpage = [8, 12, 16, 30, 20, 34, 0, 4, 24, 8, 12, 16, 30, 20, 34]
        rounds = [(g, k) for g in range(15) for k in range(4) if (g, k) != (2, 3)]
        RG = []
        for g in range(15):
            ks = [k for (gg, k) in rounds if gg == g]
            RG.append(reg(f"RG{g}", rgpage[g], 4 * PG, [f"R{g}_{k}" for k in ks], False, 4 * len(ks)))
        REX = reg("EX", 0, 4 * PG, [], False, 4, nwrites=4)

        rot = cfg.get("rot", 1); rot3 = cfg.get("rot3", 1)
        LH, LM, LW = cfg.get("lath", 450), cfg.get("latm", 1100), cfg.get("latw", 800)
        ntx = " nt" if cfg.get("ntx") else ""; ntw = " nt" if cfg.get("ntw") else ""; nt3 = " nt" if cfg.get("nt3") else ""
        def kofs(s, stride):
            return (sT0, ("k", s, stride), [f"s_xor_b32 s{sT0}, s{sR}, {s}", f"s_mul_i32 s{sT0}, s{sT0}, {stride}"] if s else [f"s_mul_i32 s{sT0}, s{sR}, {stride}"])
        def mm(first, f): return dict(lat=LM, miss=f) if (first or not rot) else dict(lat=LH)
        def xjobs(s):
            for q in range(4):
                self.add(Job(f"X{s}_{q}", f"buffer_load_dwordx4 v{vXd[q]}, {srd(S_X)}, s{sT0} offen offset:{1024*q}{ntx} lds",
                             m0=(sW4k, RX[s].lo), soff=kofs(s, 128), region=RX[s], **mm(s < 2, 1 if rot else 0.25)))
        def wkjobs(s):
            for u in range(2):
                self.add(Job(f"WK{s}_{u}", f"buffer_load_dwordx4 v{vWK[u]}, {srd(S_WQKV)}, s{sT0} offen offset:{1024*u}{ntw} lds",
                             m0=(sW2k, RWK[s].lo), soff=kofs(s, 64 * 3072), region=RWK[s],
                             cond=(lambda: "zero" in self.flags) if s == 2 else None, **mm(s < 2, 0.5 if rot else 0.125)))
        for s in range(8):
            xjobs(s); wkjobs(s)
            if s == 1:
                for q in range(2):
                    self.add(Job(f"GW_{q}", f"buffer_load_dwordx4 {V(GW_+4*q,4)}, v{vGw}, {srd(S_GW)}, 0 offen offset:{512*q}", lines=4, lat=LM,
                                 cond=lambda: "gwsrd" in self.flags))
            if s == cfg.get("gxpos", 3):
                for q in range(2):
                    self.add(Job(f"GX_{q}", f"buffer_load_dwordx4 {V(GX+4*q,4)}, v{vGx}, {srd(S_X)}, 0 offen offset:{512*q}", lat=LH,
                                 cond=lambda: "addr1" in self.flags))
        def w1jobs(s):
            for t in range(3):
                self.add(Job(f"W1{s}_{t}", f"buffer_load_dwordx4 v{vW1d[t]}, {srd(S_W1)}, s{sT0} offen offset:{1024*t}{ntw} lds",
                             m0=(sW3k, RW1[s].lo), soff=kofs(s, 64 * 2752), region=RW1[s], lines=11,
                             cond=lambda: {"addr2", "srd"} <= self.flags, **mm(s < 2, 0.4 if rot else 0.1)))
        def wqjobs(s):
            for u in range(2):
                self.add(Job(f"WQ{s}_{u}", f"buffer_load_dwordx4 v{vWQ[u]}, {srd(S_WQKV)}, s{sT0} offen offset:{1024*u}{ntw} lds",
                             m0=(sW2k, RWQ[s].lo), soff=kofs(2 * s, 64 * 3072), region=RWQ[s], lines=16,
                             cond=lambda: "addr2" in self.flags, **mm(s < 1, 0.25 if rot else 0.0625)))
        wq0 = cfg.get("wq0pos", 1)
        for s in range(8):
            w1jobs(s)
            if s == wq0: wqjobs(0)
        for s in range(1, 4): wqjobs(s)
        def rjobs(g):
            for (gg, k) in rounds:
                if gg != g: continue
                if g < 3: sr, so = S_W2, (sT0, sRw2, (8 + g) * 65536)
                elif g < 11:
                    sr = S_W2
                    so = (sT0, ("r", g), [f"s_xor_b32 s{sT0}, s{sX16}, {(g-3) << 16:#x}", f"s_add_u32 s{sT0}, s{sT0}, s{sRw2}"] if g > 3 else [f"s_add_u32 s{sT0}, s{sX16}, s{sRw2}"])
                else: sr, so = S_WO, (sT0, ("r", g), [f"s_xor_b32 s{sT0}, s{sRwo}, {(g-11) << 16:#x}"])
                if not rot3: kw = dict(lat=LM, miss=0.25)
                elif g < 3: kw = dict(lat=LM, miss=0.25)
                elif g < 5: kw = dict(lat=LM, miss=1)
                elif g == 11 and not cfg.get("pfo", 1): kw = dict(lat=LM, miss=1)
                else: kw = dict(lat=LH)
                self.add(Job(f"R{g}_{k}", f"buffer_load_dwordx4 v{vRd[k]}, {srd(sr)}, s{sT0} offen offset:{1024*k}{nt3} lds",
                             m0=(sW4k, RG[g].lo), soff=so, region=RG[g], cond=lambda: {"addr2", "srd"} <= self.flags, **kw))
        kvok = lambda: "poll_kv" in self.flags
        for b in range(3):
            for h in range(2):
                self.add(Job(f"K{b}_{h}", f"buffer_load_dwordx4 v{vLin}, {srd(S_WS)}, s{sKVl0+b} offen offset:{1024*h} sc1 lds",
                             m0=(sWK, RK.lo + 2048 * b), region=RK, cond=kvok, lat=LW, miss=0.4))
            for h in range(2):
                self.add(Job(f"V{b}_{h}", f"buffer_load_dwordx4 v{vLin}, {srd(S_WS)}, s{sT0} offen offset:{1024*h} sc1 lds",
                             m0=(sWV, RV.lo + 2560 * b + 256 * h), soff=(sT0, sKVl0 + b, 32768), region=RV, cond=kvok, lat=LW, miss=0.4))
        for g in range(6):
            rjobs(g)
            if g == cfg.get("pfopos", 4) and cfg.get("pfo", 1):
                self.add(Job("PFO", f"buffer_load_dword v{vW1d[1]}, v{vW1d[0]}, {srd(S_WO)}, s{sRwo} offen", lines=32, lat=LM, miss=1,
                             cond=lambda: "pfo" in self.flags))
        hok = lambda: "poll_h" in self.flags
        hj = []
        for a_, (g, k) in enumerate(rounds[:43]):
            if g < 3: so = (sT1, sHl, 4096 * (8 + g))
            else: so = (sT1, ("h", g), [f"s_xor_b32 s{sT1}, s{sX12}, {(g-3) << 12:#x}", f"s_add_u32 s{sT1}, s{sT1}, s{sHl}"] if g > 3 else [f"s_add_u32 s{sT1}, s{sX12}, s{sHl}"])
            kw = dict(lat=LW, miss=0.125) if (g < 3 or not rot3) else dict(lat=LW, miss=1) if g == 3 else dict(lat=LH)
            hj.append(Job(f"H{a_}", f"buffer_load_dwordx4 {A(4*a_)}, v{vLin}, {srd(S_WS)}, s{sT1} offen offset:{1024*k} sc1", soff=so, cond=hok, **kw))
        ook = lambda: "poll_o" in self.flags
        oj = [Job(f"O{a}", f"buffer_load_dwordx4 {A(172+4*a)}, v{vLin}, {srd(S_WS)}, s{sT1} offen offset:{1024*(a%4)} sc1",
                  soff=(sT1, ("o", a // 4), [f"s_xor_b32 s{sT1}, s{sOl}, {(a // 4) << 12:#x}"]), cond=ook,
                  **(dict(lat=LW, miss=0.125) if not rot3 else dict(lat=LW, miss=0.5) if a < 4 else dict(lat=LH))) for a in range(16)]
        hsplit = cfg.get("hsplit", 36)
        for a in range(hsplit): self.add(hj[a])
        rjobs(6)
        for a in range(hsplit, 43): self.add(hj[a])
        self.add(Job("G", f"buffer_load_dwordx2 {V(254,2)}, v{vGw}, {srd(S_WS)}, s{sGl} offen sc1", lines=2, cond=hok, lat=LW, miss=0.125))
        rjobs(7); rjobs(8); rjobs(9); rjobs(10)
        oord = cfg.get("oord", 0)
        if oord == 0:
            for g in range(11, 15):
                rjobs(g)
                for a in range(4): self.add(oj[4 * (g - 11) + a])
        else:
            for g in range(11, 15): rjobs(g)
            for a in range(16): self.add(oj[a])

        self.stamp("entry")
        if cfg.get("debug"): I(f"s_memrealtime s[{S_ST+2}:{S_ST+3}]", untracked=True)
        KA = S_P + 8
        self.raw(f"""
            s_cmp_ge_u32 s2, 0x100
            s_cbranch_scc1 L_end
            s_load_dwordx2 s[{S_X}:{S_X+1}], s[0:1], 0
            s_load_dwordx2 s[{S_WQKV}:{S_WQKV+1}], s[0:1], 8
            s_load_dwordx16 s[{KA}:{KA+15}], s[0:1], 16
        """)
        t = TMP
        sXcd, sS, sRb, sG_, sKh, sMh, sRb3, sC = S_P, S_P + 1, S_P + 2, S_P + 3, S_P + 4, S_P + 5, S_P + 6, S_P + 7
        sa, sb = sT1, sSafe
        I(f"s_lshr_b32 s{sS}, s2, 3")
        if cfg.get("pf", 1):
            self.raw(f"""
                s_getpc_b64 s[{sRb3}:{sRb3+1}]
                L_pc:
                v_lshrrev_b32 v250, 4, v0
                v_lshl_add_u32 v250, s{sS}, 4, v250
                v_min_u32 v250, (L_end-L_pc)/64, v250
                v_mad_u64_u32 v[250:251], vcc, v250, 64, s[{sRb3}:{sRb3+1}]
            """)
            I("global_load_dword v252, v[250:251], off", lines=1, lat=LM)
        vL, vH, vL31, vL3s, vL4s, vSw = t, t + 1, t + 2, t + 3, t + 4, t + 5
        a, b, c = t + 6, t + 7, t + 8
        self.raw(f"""
            v_lshrrev_b32 v{a}, 6, v0
            v_and_b32 v{vL}, 63, v0
            v_readfirstlane_b32 s{sW}, v{a}
            s_and_b32 s{sa}, s2, 1
            s_and_b32 s{sb}, s{sS}, 7
            s_lshl3_add_u32 s{sI}, s{sa}, s{sb}
            s_bfe_u32 s{sa}, s2, 0x20001
            s_lshr_b32 s{sb}, s2, 6
            s_lshl2_add_u32 s{sJ}, s{sa}, s{sb}
            s_add_u32 s{sR}, s{sb}, s{sS}
            s_and_b32 s{sR}, s{sR}, {3 if rot else 0}
            s_lshl_b32 s{sR}, s{sR}, 1
            s_lshl2_add_u32 s{sRb}, s{sI}, s{sW}
            s_lshl_b32 s{sW4k}, s{sW}, 12
            s_lshl_b32 s{sW2k}, s{sW}, 11
            v_lshrrev_b32 v{vL3s}, 3, v{vL}
            v_lshrrev_b32 v{vL4s}, 4, v{vL}
            v_and_b32 v{a}, 7, v{vL}
            v_xor_b32 v{b}, v{a}, v{vL4s}
            v_lshlrev_b32 v{b}, 4, v{b}
            v_lshl_add_u32 v{b}, v{vL3s}, 10, v{b}
            v_lshl_add_u32 v{vXd[0]}, s{sRb}, 15, v{b}
            v_xor_b32 v{vXd[1]}, 64, v{vXd[0]}
            v_add_u32 v{vXd[1]}, 7168, v{vXd[1]}
            v_add_u32 v{vXd[2]}, 14336, v{vXd[0]}
            v_add_u32 v{vXd[3]}, 14336, v{vXd[1]}
            v_bfe_u32 v{b}, v{vL}, 4, 1
            v_lshlrev_b32 v{b}, 2, v{b}
            v_xor_b32 v{b}, v{a}, v{b}
            v_lshlrev_b32 v{vSw}, 4, v{b}
            s_and_b32 s{sa}, s{sJ}, 1
            s_lshr_b32 s{sG_}, s{sJ}, 1
            s_lshl3_add_u32 s{sa}, s{sa}, s{sG_}
            s_mul_i32 s{sb}, s{sW}, {16*3072//128}
            s_add_u32 s{sa}, s{sa}, s{sb}
            s_add_u32 s{sa}, s{sa}, 8
            s_lshl_b32 s{sa}, s{sa}, 7
            v_mul_u32_u24 v{b}, 3072, v{vL3s}
            v_add3_u32 v{vWK[0]}, v{b}, v{vSw}, s{sa}
            v_add_u32 v{vWK[1]}, 23552, v{vWK[0]}
            s_mov_b32 s{S_X+2}, {2048*1024}
            s_mov_b32 s{S_X+3}, 0x20000
            s_mov_b32 s{S_WQKV+2}, {512*3072}
            s_mov_b32 s{S_WQKV+3}, s{S_X+3}
            v_and_b32 v{vL31}, 31, v{vL}
            v_lshlrev_b32 v{vGw}, 4, v{vL31}
            s_movk_i32 s{S_GW+2}, 1024
            s_mov_b32 s{S_GW+3}, s{S_X+3}
        """)
        F = self.fill
        def atoms(txt, cond=None):
            for l in txt.strip("\n").split("\n"):
                l = l.strip()
                if not l: continue
                F.append((cond, [x.strip() for x in l.split(";;")]))
        def flag(name, cond=None): F.append((cond, lambda: self.flags.add(name)))
        karg = lambda: "karg" in self.flags
        atoms(f"s_mov_b64 s[{S_GW}:{S_GW+1}], s[{KA+8}:{KA+9}]", karg)
        flag("gwsrd", karg)
        atoms(f"""
            s_mov_b64 s[{S_WS}:{S_WS+1}], s[{KA+14}:{KA+15}]
            s_mov_b64 s[{S_W1}:{S_W1+1}], s[{KA+4}:{KA+5}]
        """, karg)
        def zero():
            self.raw(f"""
                s_cmp_eq_u32 s{sZ}, 0
                s_cbranch_scc1 L_nozero
                v_mov_b32 v{244}, 0
                v_mov_b32 v{245}, 0
                v_mov_b32 v{246}, 0
                v_mov_b32 v{247}, 0
                s_lshl_b32 s{sT2}, s{sI}, 13
                s_add_u32 s{sT2}, s{sT2}, s{sW2k}
                s_add_u32 s{sT2}, s{sT2}, {MB:#x}
            """)
            for k in range(2):
                x = Ins(f"buffer_store_dwordx4 v[244:247], v{vLin}, {srd(S_WS)}, s{sT2} offen offset:{1024*k} sc1"); P.pad(x); P.out.append(x)
            P.out.append(Ins("s_nop 1"))
            P.label("L_nozero")
            self.flags.add("zero")
        F.append((lambda: karg() and "pre" in self.flags, zero))
        atoms(f"""
            s_mov_b64 s[{S_WO}:{S_WO+1}], s[{KA}:{KA+1}]
            s_mov_b64 s[{S_W2}:{S_W2+1}], s[{KA+6}:{KA+7}]
            s_mov_b64 s[{S_OUT}:{S_OUT+1}], s[{KA+10}:{KA+11}]
            s_mov_b64 s[{S_DBG}:{S_DBG+1}], s[{KA+12}:{KA+13}]
        """, karg)
        flag("srd", karg)
        atoms(f"""
            s_mov_b32 s{S_WS+2}, {WSN:#x}
            s_mov_b32 s{S_WS+3}, s{S_X+3}
            v_lshlrev_b32 v{vLin}, 4, v{vL}
            s_cmp_eq_u32 s{sJ}, 15
        """)
        flag("pre")
        atoms(f"""
            s_movk_i32 s{S_DBG+2}, 256
            s_mov_b32 s{S_DBG+3}, s{S_X+3}
            s_mov_b32 s{S_W2+2}, {1376*1024}
            s_mov_b32 s{S_W2+3}, s{S_X+3}
            s_mov_b32 s{S_WO+2}, {512*1024}
            s_mov_b32 s{S_WO+3}, s{S_X+3}
            s_mov_b32 s{S_OUT+2}, {2048*1024}
            s_mov_b32 s{S_OUT+3}, s{S_X+3}
            s_mov_b32 s{S_W1+3}, s{S_X+3}
            s_and_b32 s{sXcd}, s2, 7
            v_lshrrev_b32 v{vH}, 5, v{vL}
        """)
        vR, vB4, vTb = t + 9, t + 10, t + 11
        atoms(f"""
            v_lshrrev_b32 v{a}, 1, v{vL31}
            v_and_b32 v{a}, 7, v{a}
            v_xor_b32 v{a}, v{a}, v{vH}
            v_lshlrev_b32 v{a}, 4, v{a}
            v_lshl_add_u32 v{a}, v{vL31}, 7, v{a}
            v_add_u32 v{vXr[0]}, s{sW4k}, v{a}
            v_xor_b32 v{vXr[1]}, 32, v{vXr[0]}
            v_xor_b32 v{vXr[2]}, 64, v{vXr[0]}
            v_xor_b32 v{vXr[3]}, 0x60, v{vXr[0]}
            v_bfe_u32 v{vR}, v{vL}, 2, 2
            v_and_b32 v{a}, 3, v{vL}
            v_lshlrev_b32 v{a}, 3, v{a}
            v_and_b32 v{b}, 1, v{vL4s}
            v_lshl_add_u32 v{vB4}, v{b}, 5, v{a}
            v_and_b32 v{b}, 1, v{vL3s}
            v_lshlrev_b32 v{vTb}, 6, v{b}
            v_lshl_add_u32 v{c}, v{vH}, 3, v{vR}
            v_lshl_add_u32 v{a}, v{c}, 7, v{vB4}
            v_add_u32 v{a}, {24*PG}, v{a}
            v_add_u32 v{vWr[0]}, v{a}, v{vTb}
            v_xor_b32 v{vWr[1]}, 64, v{vWr[0]}
            s_lshl_b32 s{sa}, s{sJ}, 1
            s_lshl_b32 s{sb}, s{sRb}, 5
            s_add_u32 s{sa}, s{sa}, s{sb}
            v_add_u32 v{a}, s{sa}, v{vH}
            v_lshl_add_u32 v{vGx}, v{a}, 10, v{vGw}
        """)
        atoms(f"""
            v_mov_b32 v{b}, {BIGV:#x}
            v_add_u32 v{a}, s{sW}, v{vL} ;; v_cmp_eq_u32 vcc, 0, v{a} ;; v_cndmask_b32 v{vZ}, v{b}, 0, vcc
        """)
        flag("vZ")
        flag("addr1")
        atoms(f"""
            v_mul_u32_u24 v{a}, 192, v{c}
            v_add_u32 v{a}, v{a}, v{vB4}
            v_add_u32 v{vW1r[0]}, {8*PG}, v{a}
            v_add_u32 v{vW1r[1]}, {24*PG}, v{a}
            v_lshl_add_u32 v{a}, v{c}, 6, v{vB4}
            v_add_u32 v{vWQr[0]}, {20*PG}, v{a}
            v_add_u32 v{vWQr[1]}, {36*PG}, v{a}
            s_mul_i32 s{sW3k}, s{sW}, 3072
            s_mul_i32 s{sa}, s{sW}, {16*2752}
            s_mul_i32 s{sb}, s{sJ}, 192
            s_add_u32 s{sa}, s{sa}, s{sb}
        """)
        for k in range(3):
            atoms(f"""
                v_add_u32 v{a}, {64*k}, v{vL}
                v_mul_u32_u24 v{b}, 0xaaab, v{a}
                v_lshrrev_b32 v{b}, 19, v{b}
                v_mul_u32_u24 v{vW1d[k]}, 12, v{b}
                v_sub_u32 v{a}, v{a}, v{vW1d[k]}
                v_mul_u32_u24 v{b}, 2752, v{b}
                v_lshl_add_u32 v{a}, v{a}, 4, v{b}
                v_add_u32 v{vW1d[k]}, s{sa}, v{a}
            """)
            if k: atoms(f"v_subrev_u32 v{vW1d[k]}, {1024*k}, v{vW1d[k]}")
        atoms(f"""
            s_mul_i32 s{sa}, s{sW}, {32*3072}
            s_lshl_b32 s{sb}, s{sJ}, 6
            s_add_u32 s{sa}, s{sa}, s{sb}
            v_lshrrev_b32 v{a}, 2, v{vL}
            v_mul_u32_u24 v{a}, 3072, v{a}
            v_and_b32 v{b}, 3, v{vL}
            v_lshl_add_u32 v{a}, v{b}, 4, v{a}
            v_add_u32 v{vWQ[0]}, s{sa}, v{a}
            v_add_u32 v{vWQ[1]}, 48128, v{vWQ[0]}
            s_lshr_b32 s{sKh}, s{sW}, 1
            s_and_b32 s{sMh}, s{sW}, 1
            s_lshr_b32 s{sC}, s{sS}, 2
            s_lshl_b32 s{sa}, s{sXcd}, 2
            s_and_b32 s{sb}, s{sS}, 3
            s_add_u32 s{sa}, s{sa}, s{sb}
            s_lshl_b32 s{sRb3}, s{sa}, 1
            s_add_u32 s{sRb3}, s{sRb3}, s{sMh}
            s_lshl_b32 s{sa}, s{sMh}, 13
            s_lshl_b32 s{sb}, s{sC}, 7
            s_add_u32 s{sa}, s{sa}, s{sb}
            v_lshl_add_u32 v{a}, v{vL3s}, 10, v{vSw}
            v_add_u32 v{vRd[0]}, s{sa}, v{a}
            v_add_u32 v{vRd[1]}, 15360, v{vRd[0]}
            v_add_u32 v{vRd[2]}, 30720, v{vRd[0]}
            v_add_u32 v{vRd[3]}, 46080, v{vRd[0]}
            s_mul_i32 s{sRw2}, s{sKh}, {43*16384}
            s_add_u32 s{sa}, s{sS}, s{sC}
            s_and_b32 s{sa}, s{sa}, 3
            s_lshr_b32 s{sb}, s{sC}, 2
            s_lshl1_add_u32 s{sa}, s{sa}, s{sb}
            s_and_b32 s{sa}, s{sa}, {7 if rot3 else 0}
            s_lshl_b32 s{sX12}, s{sa}, 12
            s_lshl_b32 s{sX16}, s{sa}, 16
            s_xor_b32 s{sa}, s{sS}, s{sC}
            s_and_b32 s{sa}, s{sa}, {3 if rot3 else 0}
            s_lshl2_add_u32 s{sRwo}, s{sKh}, s{sa}
            s_lshl_b32 s{sRwo}, s{sRwo}, 16
        """)
        flag("addr2")
        atoms(f"""
            s_mul_i32 s{sWK}, s{sW}, 6144
            s_mul_i32 s{sWV}, s{sW}, 7680
            v_mov_b32 v{b}, {BIGV:#x}
            v_lshlrev_b32 v{a}, 3, v{vH}
            v_cmp_eq_u32 vcc, 31, v{vL31}
            v_add_u32 v{a}, s{sW2k}, v{vLin}
            v_add_u32 v{vKr}, {24*PG}, v{a}
            v_and_b32 v{a}, 15, v{vL}
            v_lshlrev_b32 v{a}, 4, v{a}
            v_lshl_add_u32 v{b}, v{vH}, 9, v{a}
            v_add_u32 v{a}, 1024, v{a}
            s_mul_i32 s{sa}, s{sW}, 2560
            v_cmp_gt_u32 vcc, 16, v{vL31}
            v_add_u32 v{vVr[0]}, s{sa}, v{vVr[0]}
            v_add_u32 v{vVr[1]}, s{sa}, v{vVr[1]}
            v_lshl_add_u32 v{a}, v{vH}, 2, v{vR}
            v_lshl_add_u32 v{a}, v{a}, 7, v{vB4}
            s_lshl_b32 s{sa}, s{sKh}, 13
            v_add3_u32 v{vRr[0][0]}, v{a}, v{vTb}, s{sa}
            v_xor_b32 v{vRr[0][1]}, 64, v{vRr[0][0]}
            v_add_u32 v{vRr[1][0]}, {16*PG}, v{vRr[0][0]}
            v_add_u32 v{vRr[1][1]}, {16*PG}, v{vRr[0][1]}
            v_add_u32 v{vRr[2][0]}, {32*PG}, v{vRr[0][0]}
            v_add_u32 v{vRr[2][1]}, {32*PG}, v{vRr[0][1]}
            s_lshl_b32 s{sa}, s{sRb}, 16
            s_and_b32 s{sb}, s{sJ}, 1
            s_lshl_b32 s{sb}, s{sb}, 15
            s_add_u32 s{sa}, s{sa}, s{sb}
            s_lshl_b32 s{sb}, s{sG_}, 12
            s_add_u32 s{sa}, s{sa}, s{sb}
            s_add_u32 s{sKVs}, s{sa}, {KVB:#x}
            s_lshl_b32 s{sa}, s{sRb}, 17
            s_mul_i32 s{sb}, s{sJ}, 6144
            s_add_u32 s{sHs}, s{sa}, s{sb}
            s_add_u32 s{sHs}, s{sHs}, {AB:#x}
            s_lshl_b32 s{sb}, s{sJ}, 11
            s_add_u32 s{sOs}, s{sa}, s{sb}
            s_add_u32 s{sOs}, s{sOs}, {AB + 96*1024:#x}
            s_lshl_b32 s{sa}, s{sRb3}, 17
            s_mul_i32 s{sb}, s{sKh}, {43*1024}
            s_add_u32 s{sHl}, s{sa}, s{sb}
            s_add_u32 s{sHl}, s{sHl}, {AB:#x}
            s_lshr_b32 s{sb}, s{sRwo}, 4
            s_add_u32 s{sOl}, s{sa}, s{sb}
            s_add_u32 s{sOl}, s{sOl}, {AB + 96*1024:#x}
            s_lshl_b32 s{sa}, s{sI}, 13
            s_lshl_b32 s{sb}, s{sJ}, 9
            s_add_u32 s{sa}, s{sa}, s{sb}
            s_lshl_b32 s{sb}, s{sW}, 7
            s_add_u32 s{sa}, s{sa}, s{sb}
            s_add_u32 s{sFkvR}, s{sa}, {MB + 96:#x}
            s_lshl_b32 s{sa}, s{sI}, 13
            s_lshl_b32 s{sb}, s{sG_}, 10
            s_add_u32 s{sa}, s{sa}, s{sb}
            s_and_b32 s{sb}, s{sJ}, 1
            s_lshl_b32 s{sb}, s{sb}, 2
            s_add_u32 s{sa}, s{sa}, s{sb}
            s_add_u32 s{sFkvW}, s{sa}, {MB + 96:#x}
            s_lshl_b32 s{sa}, s{sRb}, 11
            s_lshl_b32 s{sb}, s{sJ}, 2
            s_add_u32 s{sb}, s{sa}, s{sb}
            s_add_u32 s{sFhW}, s{sb}, {MB:#x}
            s_lshr_b32 s{sb}, s{sJ}, 3
            s_mul_i32 s{sb}, s{sb}, 96
            s_add_u32 s{sFoW}, s{sFhW}, s{sb}
            s_add_u32 s{sFoW}, s{sFoW}, 64
            s_lshl_b32 s{sa}, s{sRb3}, 11
            s_lshl_b32 s{sb}, s{sC}, 8
            s_add_u32 s{sa}, s{sa}, s{sb}
            s_lshl_b32 s{sb}, s{sKh}, 7
            s_add_u32 s{sa}, s{sa}, s{sb}
            s_add_u32 s{sFhR}, s{sa}, {MB:#x}
            s_lshl_b32 s{sa}, s{sRb}, 8
            s_lshl_b32 s{sb}, s{sJ}, 4
            s_add_u32 s{sa}, s{sa}, s{sb}
            s_add_u32 s{sGs}, s{sa}, {GP:#x}
            s_lshl_b32 s{sa}, s{sRb3}, 8
            s_add_u32 s{sGl}, s{sa}, {GP:#x}
            s_lshl_b32 s{sa}, s{sRb3}, 15
            s_lshl_b32 s{sb}, s{sC}, 7
            s_add_u32 s{sa}, s{sa}, s{sb}
            s_lshl_b32 s{sb}, s{sKh}, 6
            s_add_u32 s{sOut}, s{sa}, s{sb}
            s_mov_b32 s{sTmo}, {cfg.get('tmo', 20000)}
            s_mov_b32 s{sThr}, {f2u(110.0):#x}
            s_bitcmp1_b32 s{sJ}, 0
            s_lshl_b32 s{sa}, s{sI}, 2
            s_mul_i32 s{sb}, s{sW}, 3
            s_add_u32 s{sa}, s{sa}, s{sb}
            s_lshl_b32 s{sb}, s{sJ}, 11
            s_add_u32 s{sb}, s{sb}, {(KVB - 8*65536) & 0xffffffff:#x}
        """)
        for k in range(3):
            atoms(f"""
                s_add_u32 s{sT2}, s{sa}, {k}
            """)
        vQm, vNeg = t + 12, t + 13
        atoms(f"""
            v_lshlrev_b32 v{a}, 2, v{vH}
            v_sub_u32 v{vQm}, v{vL31}, v{a}
            v_mov_b32 v{vNeg}, {NEG:#x}
        """)
        for r0 in range(0, 16, 4):
            L = []
            for r in range(r0, r0 + 4):
                L.append(f"v_cmp_le_i32 s[{S_P+10+2*(r-r0)}:{S_P+11+2*(r-r0)}], {(r&3)+8*(r>>2)}, v{vQm}")
            for r in range(r0, r0 + 4):
                m = f"s[{S_P+10+2*(r-r0)}:{S_P+11+2*(r-r0)}]"
                L.append(f"v_cndmask_b32 v{mD+r}, v{vNeg}, 0, {m}")
                L.append(f"v_cndmask_b32 v{mF+r}, 0, v{vNeg}, {m}")
            atoms("\n".join(L), lambda: "srd" in self.flags)
        vOa, vOv = t + 14, t + 16
        atoms(f"""
            s_mul_i32 s{sa}, s{sW}, 6
            v_add_u32 v{vOa}, s{sa}, v{vL4s}
            v_and_b32 v{a}, 1, v{vL4s}
            v_add3_u32 v{vOa+1}, v{a}, 4, s{sa}
            s_lshl_b32 s{sb}, s{sI}, 3
            v_mov_b32 v{b}, 0x3f803f80
            v_add_u32 v{a}, s{sb}, v{vOa}
            v_add_u32 v{a}, s{sb}, v{vOa+1}
            v_and_b32 v{a}, 15, v{vL}
            v_lshlrev_b32 v{a}, 4, v{a}
            v_add_u32 v{a}, 1024, v{a}
            v_mul_u32_u24 v{vOa}, 1280, v{vOa}
            v_add_u32 v{vOa}, v{vOa}, v{a}
            v_mul_u32_u24 v{vOa+1}, 1280, v{vOa+1}
            v_add_u32 v{vOa+1}, v{vOa+1}, v{a}
        """)
        flag("addr3")
        atoms(f"v_lshlrev_b32 v{vW1d[0]}, 6, v{vGw}",
              lambda: self.issued(*[n for r in RW1 for n in r.jobnames]))
        flag("pfo", lambda: self.issued(*[n for r in RW1 for n in r.jobnames]))
        while P.t < cfg.get("prefill", 900) and self.fill_some(1): pass
        self.P.set_x(*kofs(0, 128)); self.P.set_m0(sW4k, RX[0].lo)
        P.wait(lg=0)
        P.t = max(P.t, cfg.get("tkarg", 1500))
        if cfg.get("debug"): I(f"s_mov_b32 s0, s{S_ST+2}")
        self.stamp("karg")
        self.flags.add("karg")
        self.force(RX[0].jobnames)
        self.stamp("ld0")
        while not {"addr1", "srd", "zero"} <= self.flags:
            self.slot(cfg.get("H0", 270)); self.fill_some(4)

        items = []
        for s in range(8):
            for kk in range(4):
                for tl in range(2): items.append(("kv", tl, 4 * s + kk))
        n1 = len(items)
        split = cfg.get("split", 5)
        for ks in range(4 * split):
            for tl in range(3): items.append(("h", tl, ks))
        marks = {}
        for tl in range(3):
            for ks in range(4 * split, 32): items.append(("h", tl, ks))
            marks[tl] = len(items)
        for ks in range(32): items.append(("q", 0, ks))
        nall = len(items)
        LA = cfg.get("LA", 5)
        xbias = [0]

        def reads(m):
            kind, tl, ks = items[m]
            fb = WF + 4 * (m % NB)
            if kind == "kv":
                s, kk = ks // 4, ks % 4
                if not RWK[s].fenced:
                    self.bar([RX[s], RWK[s]])
                    if s in (0, 1, 2, 4, 6): self.stamp(f"bar1_{s}")
                    if s == 2:
                        self.raw(f"""
                            s_cmp_eq_u32 s{sZ}, 0
                            s_cbranch_scc1 L_nogate{self.kv}
                            v_mov_b32 v{253}, -1
                        """)
                        assert "vZ" in self.flags
                        x = Ins(f"buffer_store_byte v253, v{vZ}, {srd(S_DBG)}, s{sI} offen sc1"); P.out.append(x)
                        P.label(f"L_nogate{self.kv}")
                want = 65536 if xpage[s] >= 16 else 0
                if want != xbias[0]:
                    d = want - xbias[0]
                    for r in vXr:
                        I(f"v_add_u32 v{r}, {d}, v{r}" if d > 0 else f"v_subrev_u32 v{r}, {-d}, v{r}")
                    xbias[0] = want
                if tl == 0:
                    I(f"ds_read_b128 {A(4*ks)}, v{vXr[kk]} offset:{RX[s].lo - want}", region=RX[s])
                for q in range(2):
                    I(f"ds_read_b64_tr_b16 {V(fb+2*q,2)}, v{vWr[tl]} offset:{RWK[s].lo - 24*PG + 2048*kk + 512*q}", region=RWK[s])
            elif kind == "h":
                s, kk = ks // 4, ks % 4
                r = RW1[s]
                if not r.fenced:
                    grp = [r] + [x for x in RW1[s+1:] if s >= split and cfg.get("tailbar", True)]
                    self.bar(grp)
                hi = r.lo >= 24 * PG
                for q in range(2):
                    I(f"ds_read_b64_tr_b16 {V(fb+2*q,2)}, v{vW1r[hi]} offset:{r.lo - (24 if hi else 8)*PG + 3072*kk + 768*q + 64*tl}", region=r)
            else:
                s, kk = ks // 8, ks % 8
                r = RWQ[s]
                if not r.fenced: self.bar([r])
                hi = r.lo >= 36 * PG
                for q in range(2):
                    I(f"ds_read_b64_tr_b16 {V(fb+2*q,2)}, v{vWQr[hi]} offset:{r.lo - (36 if hi else 20)*PG + 1024*kk + 256*q}", region=r)

        def mfma(m):
            kind, tl, ks = items[m]
            fb = V(WF + 4 * (m % NB), 4); x = A(4 * ks)
            acc = {"kv": accKV, "h": accH, "q": accQ}[kind] + 16 * tl
            cc = "0" if ks == 0 else V(acc, 16)
            if kind == "kv" and self.kv == "V": return f"v_mfma_f32_32x32x16_bf16 {V(acc,16)}, {x}, {fb}, {cc}"
            return f"v_mfma_f32_32x32x16_bf16 {V(acc,16)}, {fb}, {x}, {cc}"

        ga = t + 18; g0, g1, g2, g3 = t + 19, t + 20, t + 21, t + 22
        cur = [0]
        for s in range(8):
            cnd = (lambda s=s: self.landed(f"GX_{s//4}", f"GW_{s//4}") or (cur[0] >= cfg.get("gforce", n1 - 14) and self.issued("GX_0", "GX_1", "GW_0", "GW_1")))
            atoms(f"""
                v_lshlrev_b32 v{g0}, 16, v{GX+s}
                v_mul_f32 v{g0}, v{g0}, v{g2}
                v_lshlrev_b32 v{g1}, 16, v{g0} ;; v_and_b32 v{g0}, 0xffff0000, v{g0} ;; v_add_f32 v{g0}, v{g0}, v{g1} ;; {'v_mov_b32 v%d, v%d' % (ga, g0) if s == 0 else 'v_add_f32 v%d, v%d, v%d' % (ga, ga, g0)}
            """, cnd)
        F.append((cnd, lambda: self.flags.add("gsum")))
        cnd = lambda: "gsum" in self.flags
        atoms(f"""
            v_add_f32_dpp v{ga}, v{ga}, v{ga} row_ror:8 row_mask:0xf bank_mask:0xf
            v_add_f32_dpp v{ga}, v{ga}, v{ga} row_ror:4 row_mask:0xf bank_mask:0xf
            v_add_f32_dpp v{ga}, v{ga}, v{ga} row_ror:2 row_mask:0xf bank_mask:0xf
            v_add_f32_dpp v{ga}, v{ga}, v{ga} row_ror:1 row_mask:0xf bank_mask:0xf
            v_add_f32_dpp v{ga}, v{ga}, v{ga} row_bcast:15 row_mask:0xa bank_mask:0xf
            v_cvt_pk_bf16_f32 v{ga}, v{ga}, v{ga}
            v_lshlrev_b32 v{ga}, 16, v{ga}
            v_mul_f32 v{ga}, {f2u(-LOG2E):#x}, v{ga}
            v_exp_f32 v{ga}, v{ga}
            v_add_f32 v{ga}, 1.0, v{ga}
            v_rcp_f32 v{ga}, v{ga}
            v_cvt_pk_bf16_f32 v{ga}, v{ga}, v{ga}
            v_lshlrev_b32 v{g1}, 16, v{ga}
            v_sub_f32 v{g2}, 1.0, v{g1}
            v_cvt_pk_bf16_f32 v{g2}, v{g2}, v{g2}
            v_lshlrev_b32 v{g2}, 16, v{g2}
        """, cnd)
        assert g1 % 2 == 0
        F.append((cnd, lambda: self.flags.add("gate")))
        self.add(Job("Gst", f"buffer_store_dwordx2 {V(g1,2)}, v{vGo}, {srd(S_WS)}, s{sGs} offen sc1", lines=1,
                     cond=lambda: "gate" in self.flags, lat=1000), prio=True)

        def kv_epilogue():
            cnd = lambda: True
            nr = t + 24
            assert self.issued(*(RX[7].jobnames + RWK[7].jobnames), "GX_1") and cfg.get("gforce", 0) <= n1
            atoms(f"""
                v_lshrrev_b32 v{a}, 1, v{vL}
                v_lshlrev_b32 v{b}, 2, v{a}
                v_sub_u32 v{b}, s{sW}, v{b}
                v_add_u32 v{b}, 8, v{b}
                v_mul_u32_u24 v{c}, 0x56, v{b}
                v_lshrrev_b32 v{c}, 8, v{c}
                v_mul_u32_u24 v{vFkv}, 104, v{c}
                v_lshl_add_u32 v{vFkv}, v{b}, 3, v{vFkv}
                v_lshl_add_u32 v{vFkv}, v{a}, 13, v{vFkv}
                v_and_b32 v{b}, 1, v{vL}
                v_lshl_add_u32 v{vFkv}, v{b}, 9, v{vFkv}
                v_add_u32 v{a}, s{sI}, v{a}
                v_mov_b32 v{b}, {BIGV:#x}
                v_cmp_gt_u32 vcc, 16, v{a} ;; v_cndmask_b32 v{vFkv}, v{b}, v{vFkv}, vcc
                v_cmp_gt_u32 vcc, 6, v{vL} ;; v_cndmask_b32 v{vFkv}, v{b}, v{vFkv}, vcc
                v_lshlrev_b32 v{vFh}, 7, v{vL}
                v_cmp_gt_u32 vcc, 16, v{vL}
                v_lshlrev_b32 v{vFo}, 8, v{vL}
                v_cmp_gt_u32 vcc, 8, v{vL}
            """)
            for u in range(4):
                atoms("\n".join(f"v_cvt_pk_bf16_f32 v{PB+4*u+k}, v{accKV+8*u+2*k}, v{accKV+8*u+2*k+1}" for k in range(4)))
                F.append((None, lambda u=u: self.flags.add(f"kvp{u}")))
                self.add(Job(f"KVst{u}", f"buffer_store_dwordx4 {V(PB+4*u,4)}, v{vLin}, {srd(S_WS)}, s{sKVs} offen offset:{1024*u} sc1",
                             cond=lambda u=u: f"kvp{u}" in self.flags, lat=1100), prio=True)
            for k in range(4):
                atoms("\n".join(f"v_dot2_f32_bf16 v{nr+u}, v{PB+4*u+k}, v{PB+4*u+k}, {'0' if k == 0 else 'v%d' % (nr+u)}" for u in range(4)))
            atoms("\n".join(f"v_cmp_nle_f32 s[{S_P+2*u}:{S_P+2*u+1}], v{nr+u}, s{sThr}" for u in range(4)))
            atoms(f"""
                s_or_b64 s[{S_P}:{S_P+1}], s[{S_P}:{S_P+1}], s[{S_P+2}:{S_P+3}]
                s_or_b64 s[{S_P+4}:{S_P+5}], s[{S_P+4}:{S_P+5}], s[{S_P+6}:{S_P+7}]
                s_or_b64 s[{S_P}:{S_P+1}], s[{S_P}:{S_P+1}], s[{S_P+4}:{S_P+5}]
            """)
            flag("kvflagv")
            for k in range(2):
                def ones(k=k):
                    for e in range(4): I(f"v_mov_b32 v{accKV+4*k+e}, v{vOv+k}")
                    I(f"ds_write_b128 v{vOa+k}, {V(accKV+4*k,4)}", region=RV)
                F.append((lambda: P.can_write(RV) and "kvflagv" in self.flags, ones))
            stn = ["Gst"] + [f"KVst{u}" for u in range(4)]
            self.add(Job("KVflag", f"buffer_store_dword v{nr}, v{vFkv}, {srd(S_WS)}, s{sFkvW} offen sc1", lines=2,
                         cond=lambda: "kvflagv" in self.flags and self.issued(*stn) and "pi_gate" in self.flags,
                         after=lambda: [self.jobs[n].ins for n in stn],
                         tmin=lambda: max(self.jobs[n].ins.done for n in stn),
                         pre=lambda: self.poll_check("gate"), lat=1000), prio=True)

        one = t + 23
        def silu(tl):
            base = accH + 16 * tl
            tm = t
            for r0 in range(0, 16, 4):
                rr = range(4)
                atoms("\n".join(f"v_mul_f32 v{tm+k}, {f2u(-LOG2E):#x}, v{base+r0+k}" for k in rr))
                atoms("\n".join(f"v_exp_f32 v{tm+k}, v{tm+k}" for k in rr))
                atoms("\n".join(f"v_add_f32 v{tm+k}, 1.0, v{tm+k}" for k in rr))
                atoms("\n".join(f"v_rcp_f32 v{tm+k}, v{tm+k}" for k in rr))
                atoms("\n".join(f"v_mul_f32 v{base+r0+k}, v{base+r0+k}, v{tm+k}" for k in rr))
                u = 2 * tl + r0 // 8
                pk = t + 4 + 4 * (u % 3)
                atoms("\n".join(f"v_cvt_pk_bf16_f32 v{pk+(r0%8)//2+k}, v{base+r0+2*k}, v{base+r0+2*k+1}" for k in range(2)))
                if r0 % 8 == 4:
                    F.append((None, lambda u=u: self.flags.add(f"hp{u}")))
                    self.add(Job(f"Hst{u}", f"buffer_store_dwordx4 {V(pk,4)}, v{vLin}, {srd(S_WS)}, s{sT1} offen offset:{1024*(u%4)} sc1",
                                 soff=(sT1, sHs, 4096 * (u // 4)), cond=lambda u=u: f"hp{u}" in self.flags, lat=1100), prio=True)
                    if u >= 2:
                        F.append((None, lambda u=u: self.force([f"Hst{u-2}"])))

        P.mark("A")
        self.stamp("p1")
        for m in range(min(LA, nall)): reads(m)
        pi_kv = cfg.get("pi_kv", n1 + 52); pc_kv = cfg.get("pc_kv", n1 + 72)
        fill_end = None
        for m in range(nall):
            cur[0] = m; self.clock = m
            if m == n1: self.stamp("p2")
            if m == n1 + 2: kv_epilogue(); fill_end = n1 + 24
            for tl in range(3):
                if m == marks[tl] + 1:
                    silu(tl); fill_end = marks[tl + 1] + 1 if tl < 2 else nall - 4
            if m == marks[2]: self.stamp("p3")
            H = cfg.get("H1", 270) if m < n1 else cfg.get("H2", 270)
            j = self.pick(H)
            if j is not None: self.setup(j)
            I(mfma(m))
            if j is not None: self.fire(j)
            if m == cfg.get("pi_gate", n1 - 4):
                assert self.issued("GW_0", "GW_1")
                self.poll_issue("gate"); self.flags.add("pi_gate")
            if m == pi_kv:
                self.force(["KVflag"]); self.poll_issue("kv")
            if m == pc_kv:
                self.poll_check("kv"); self.stamp("kvok")
                I(f"v_mov_b32 v{vFkv}, s{sSafe}")
                I(f"s_lshl_b32 s{sT2}, s{sW}, 2")
                I(f"v_add_u32 v{vZ}, s{sT2}, v{vLin}")
                I(f"ds_write_b32 v{vZ}, v{vFkv} offset:{SAFE}", region=RS)
            if m + LA < nall: reads(m + LA)
            if fill_end is not None and m < fill_end:
                n = sum(1 if callable(x[1]) else len(x[1]) for x in F)
                self.fill_some(-(-n // (fill_end - m)))
            while P.t < P.mfma_free - 8 and self.fill_some(1): pass
            if m == n1 - 1: P.mark("B")
        self.stamp("p3end")
        self.bar([RK, RV, RS])
        self.stamp("ba")
        I(f"ds_read_b128 {V(VF,4)}, v{vLin} offset:{SAFE}", region=RS)
        def kread(n):
            I(f"ds_read_b128 {V(KF+4*(n%2),4)}, v{vKr} offset:{2048*(n%9)+1024*(n//9)}", region=RK)
        def vread(n, half):
            I(f"ds_read_b128 {V(VF+8*(n%2)+4*half,4)}, v{vVr[n//9]} offset:{1280*(2*(n%9)+half)}", region=RV)
        kread(0); kread(1)
        while self.fill_some(8): self.slot(cfg.get("H2", 270))
        self.force([f"Hst{u}" for u in range(6)])
        hst = [f"Hst{u}" for u in range(6)]
        I(f"v_mov_b32 v{one}, 1")
        self.add(Job("Hflag", f"buffer_store_dword v{one}, v{vFh}, {srd(S_WS)}, s{sFhW} offen sc1", lines=4,
                     after=lambda: [self.jobs[n].ins for n in hst],
                     tmin=lambda: max(self.jobs[n].ins.done for n in hst), lat=1000), prio=True)
        for r in range(16): I(f"v_mul_f32 v{accQ+r}, {f2u(0.25*LOG2E):#x}, v{accQ+r}")
        for k in range(8): I(f"v_cvt_pk_bf16_f32 v{QF+k}, v{accQ+2*k}, v{accQ+2*k+1}")
        for k in range(4):
            for u in range(2):
                I(f"v_dot2_f32_bf16 v{t+u}, v{QF+4*u+k}, v{QF+4*u+k}, {'0' if k == 0 else 'v%d' % (t+u)}")
        I(f"s_mov_b32 s{sT2}, {f2u(14.4):#x}")
        I(f"v_lshrrev_b32 v{vGw}, 1, v{vGw}")
        def smfma(n):
            tau = n % 9
            cc = V(mF, 16) if tau == 0 else V(mD, 16) if tau == 8 else "0"
            return f"v_mfma_f32_32x32x16_bf16 {V(SB+16*(n%2),16)}, {V(KF+4*(n%2),4)}, {V(QF+4*(n//9),4)}, {cc}"
        I(f"v_min3_u32 v{VF}, v{VF}, v{VF+1}, v{VF+2}")
        I(f"v_min_u32 v{VF}, v{VF}, v{VF+3}")
        I(smfma(0))
        I(f"v_readfirstlane_b32 s{sSafe}, v{VF}")
        for u in range(2): I(f"v_cmp_nle_f32 s[{S_P+2*u}:{S_P+2*u+1}], v{t+u}, s{sT2}")
        I(f"s_or_b64 s[{S_P}:{S_P+1}], s[{S_P}:{S_P+1}], s[{S_P+2}:{S_P+3}]")
        I(f"s_cbranch_scc1 L_slow")
        I(f"s_bitcmp1_b32 s{sSafe}, 1")
        I(f"s_cbranch_scc0 L_slow")
        P.mark("C")

        def oepi(hd, pk):
            o = OB + 16 * hd
            atoms(f"v_rcp_f32 v{t+2}, v{o+8}")
            atoms("\n".join(f"v_mul_f32 v{o+r}, v{o+r}, v{t+2}" for r in range(8)))
            atoms("\n".join(f"v_cvt_pk_bf16_f32 v{pk+k}, v{o+2*k}, v{o+2*k+1}" for k in range(4)))
            flag(f"op{hd}")
            self.add(Job(f"Ost{hd}", f"buffer_store_dwordx4 {V(pk,4)}, v{vLin}, {srd(S_WS)}, s{sOs} offen offset:{1024*hd} sc1",
                         cond=lambda: f"op{hd}" in self.flags, lat=900), prio=True)

        if self.slow_jobs is None:
            self.rec = []
            def pv(n, half):
                o = V(OB + 16 * (n // 9), 16)
                cc = "0" if (n % 9 == 0 and half == 0) else o
                return f"v_mfma_f32_32x32x16_bf16 {o}, {V(VF+8*(n%2)+4*half,4)}, {V(PB+8*(n%2)+4*half,4)}, {cc}"
            HA = cfg.get("HA", 270)
            pi_h, pc_h = cfg.get("pi_h", 4), cfg.get("pc_h", 7)
            for n in range(18):
                S = SB + 16 * (n % 2); Pn = PB + 8 * (n % 2)
                e = 0; cv = 0
                if n == 11: oepi(0, t + 4)
                if n in (9,): self.stamp(f"att{n}")
                for g, cnt in enumerate((6, 5, 5)):
                    mf = None; self.clock = 1000 + 3 * n + g
                    if g == 0 and n + 1 < 18: mf = smfma(n + 1)
                    if g > 0 and n > 0: mf = pv(n - 1, g - 1)
                    j = self.pick(HA)
                    if j is not None: self.setup(j)
                    if mf: I(mf)
                    if g == 0 and n == pc_h: self.poll_check("h"); self.stamp("hok")
                    if g == 0 and n + 2 < 18: kread(n + 2)
                    if g > 0: vread(n, g - 1)
                    if j is not None: self.fire(j)
                    if g == 2 and n == pi_h:
                        self.force(["Hflag"]); self.poll_issue("h")
                    for _ in range(cnt):
                        I(f"v_exp_f32 v{EB+e}, v{S+e}"); e += 1
                    lim = (e - 1) // 2 if g < 2 else 8
                    self.fill_some(3)
                    while cv < lim:
                        I(f"v_cvt_pk_bf16_f32 v{Pn+cv}, v{EB+2*cv}, v{EB+2*cv+1}"); cv += 1
            I(pv(17, 0)); I(pv(17, 1))
            self.force(["Ost0"])
            self.fast_rec = self.rec; self.rec = None
        else:
            self.in_slow = True
            P.label("L_slow")
            P.drain()
            self.slow()
            self.oepi = oepi
            oepi(0, t + 4)
            while self.fill_some(8): pass
            for kind, what in self.slow_jobs:
                if kind == "job":
                    j = self.jobs[what]
                    if j.ins is None:
                        if not self.ok(j): P.errors.append(f"slow replay: {what} blocked")
                        self.setup(j); self.fire(j)
                elif kind == "pi": self.poll_issue(what)
                elif kind == "pc": self.poll_check(what)
            P.drain()
            I("s_branch L_join")
            P.mark("E")
            return
        P.mark("D")
        P.label("L_join")
        P.forget()
        self.stamp("attend")

        its = [(g, k, tl) for (g, k) in rounds for tl in range(2)]
        n3 = len(its)
        def rreads(m):
            g, k, tl = its[m]
            r = RG[g]
            if not r.fenced: self.bar([r])
            pg = r.lo // PG; bi = 0 if pg < 16 else 1 if pg < 32 else 2
            fb = WF + 4 * (m % NB)
            for q in range(2):
                I(f"ds_read_b64_tr_b16 {V(fb+2*q,2)}, v{vRr[bi][tl]} offset:{r.lo - 16*bi*PG + 4096*q + 1024*k}", region=r)
        def rmfma(m):
            g, k, tl = its[m]
            fb = V(WF + 4 * (m % NB), 4)
            if g < 11:
                a_ = rounds.index((g, k)); acc = accB + 16 * tl; first = a_ == 0; bfr = A(4 * a_); self.force([f"H{a_}"])
            else:
                a_ = 4 * (g - 11) + k; acc = accA + 16 * tl; first = a_ == 0; bfr = A(172 + 4 * a_); self.force([f"O{a_}"])
            return f"v_mfma_f32_32x32x16_bf16 {V(acc,16)}, {fb}, {bfr}, {'0' if first else V(acc,16)}"
        LA3 = cfg.get("LA3", 5)
        for m in range(LA3): rreads(m)
        oepi(1, t + 8)
        self.add(Job("Oflag", f"buffer_store_dword v{one}, v{vFo}, {srd(S_WS)}, s{sFoW} offen sc1", lines=2,
                     cond=lambda: self.issued("Ost0", "Ost1"),
                     after=lambda: [self.jobs[n].ins for n in ("Ost0", "Ost1")],
                     tmin=lambda: self.jobs["Ost1"].ins.done, lat=1000), prio=True)
        self.fill_some(6)
        pi_o, pc_o = cfg.get("pi_o", 40), cfg.get("pc_o", 60)
        nb = 86
        expg = REX.lo
        for m in range(n3):
            cur[0] = m; self.clock = 2000 + m
            if m == nb: self.stamp("oproj")
            if m == 8:
                atoms(f"""
                    v_lshrrev_b32 v{t}, 4, v{vLin}
                    v_and_b32 v{t+1}, 31, v{t}
                    v_lshrrev_b32 v{t}, 5, v{t}
                    v_lshlrev_b32 v{t}, 4, v{t}
                    v_lshl_add_u32 v{vOut}, v{t+1}, 10, v{t}
                    v_add_u32 v{vExW}, s{sW4k}, v{vLin}
                    v_xor_b32 v{vExR}, 0x2000, v{vExW}
                """)
            if m == nb + 2:
                atoms("\n".join(f"v_mul_f32 v{accB+r}, v255, v{accB+r}" for r in range(32)))
            txt = rmfma(m)
            j = self.pick(cfg.get("H3", 270))
            if j is not None: self.setup(j)
            I(txt)
            if j is not None: self.fire(j)
            if m == pi_o:
                self.force(["Oflag"]); self.poll_issue("o")
            if m == pc_o: self.poll_check("o"); self.stamp("ook")
            if m + LA3 < n3: rreads(m + LA3)
            while P.t < P.mfma_free - 8 and self.fill_some(1): pass
        while self.fill_some(8): pass
        assert not self.main and not self.prio, [j.name for j in self.main + self.prio]
        self.stamp("epi")
        I(f"s_cmp_ge_u32 s{sW}, 2")
        P.need_waits({("v", 254), ("v", 255)})
        P.pad(Ins(f"v_add_f32 v{accA+31}, v{accA}, v{accA+16}"))
        I(f"s_cbranch_scc1 L_e1")
        st = []
        for kh in range(2):
            if kh == 1:
                I("s_branch L_e2"); P.label("L_e1")
                REX.writes = []
            snd, kp = 16 * (1 - kh), 16 * kh
            for q in range(4):
                for r in range(4 * q, 4 * q + 4):
                    I(f"v_fma_f32 v{OB+r}, v254, v{accA+snd+r}, v{accB+snd+r}")
                I(f"ds_write_b128 v{vExW}, {V(OB+4*q,4)} offset:{expg+1024*q}", region=REX)
            for r in range(16):
                I(f"v_fma_f32 v{OB+16+r}, v254, v{accA+kp+r}, v{accB+kp+r}")
        P.label("L_e2")
        P.wait(lg=0)
        P.barrier([REX])
        for q in range(4):
            I(f"ds_read_b128 {V(EB+4*q,4)}, v{vExR} offset:{expg+1024*q}", region=REX)
        for hf in range(2):
            for r in range(8 * hf, 8 * hf + 8): I(f"v_add_f32 v{OB+16+r}, v{OB+16+r}, v{EB+r}")
            for k in range(4): I(f"v_cvt_pk_bf16_f32 v{PB+4*hf+k}, v{OB+16+8*hf+2*k}, v{OB+16+8*hf+2*k+1}")
            I(f"v_permlane32_swap_b32 v{PB+4*hf}, v{PB+4*hf+2}")
            I(f"v_permlane32_swap_b32 v{PB+4*hf+1}, v{PB+4*hf+3}")
            I(f"buffer_store_dwordx4 {V(PB+4*hf,4)}, v{vOut}, {srd(S_OUT)}, s{sOut} offen offset:{32*hf}", lines=32)
        if cfg.get("debug"):
            P.wait(vm=0)
            self.stamp("end"); I(f"s_memrealtime s[{S_P}:{S_P+1}]"); P.wait(lg=0); self.stamp("end2")
            I(f"v_writelane_b32 v{vSt}, s0, 62"); I(f"v_writelane_b32 v{vSt}, s{S_P}, 63")
            self.raw(f"""
                s_lshl_b32 s{sT2}, s2, 2
                s_add_u32 s{sT2}, s{sT2}, s{sW}
                s_lshl_b32 s{sT2}, s{sT2}, 8
                s_add_u32 s{sT2}, s{sT2}, {STB:#x}
                v_lshrrev_b32 v{vLin}, 2, v{vLin}
                buffer_store_dword v{vSt}, v{vLin}, {srd(S_WS)}, s{sT2} offen
            """)
        P.mark("F")
        P.label("L_end")
        I("s_endpgm")

    def slow(self):
        P = self.P; I = self.I; t = TMP
        self.force(["Hflag"])
        sTau0, sTau, sPass, sHd, sF, sD = S_P + 16, S_P + 17, S_P + 18, S_P + 19, S_P + 20, S_P + 21
        vM, vKa, vVa, vK0, vV0 = t + 12, t + 13, t + 14, t + 15, t + 16
        CM = SB + 16; S = SB; Q = PB + 8; O = 172
        self.raw(f"""
            s_lshl_b32 s{sTau0}, s{sI}, 2
            s_add_u32 s{sTau0}, s{sTau0}, s{sW}
            s_min_u32 s{sTau0}, s{sTau0}, 8
            s_sub_u32 s{sTau0}, 8, s{sTau0}
            s_mov_b32 s{sHd}, 0
            s_lshl_b32 s{sF}, s{sTau0}, 11
            v_add_u32 v{vK0}, s{sF}, v{vKr}
            s_mul_i32 s{sF}, s{sTau0}, 2560
            v_add_u32 v{vV0}, s{sF}, v{vVr[0]}
        """)
        for k in range(4): I(f"v_mov_b32 v{Q+k}, v{QF+k}")
        P.label("Ls_head")
        I(f"v_mov_b32 v{vM}, {f2u(-3.0e38):#x}")
        for r in range(16): I(f"v_mov_b32 v{O+r}, 0")
        I(f"s_mov_b32 s{sPass}, 0")
        P.label("Ls_pass")
        I(f"s_mov_b32 s{sTau}, s{sTau0}")
        I(f"v_mov_b32 v{vKa}, v{vK0}")
        I(f"v_mov_b32 v{vVa}, v{vV0}")
        P.label("Ls_tile")
        I(f"ds_read_b128 {V(KF,4)}, v{vKa}")
        I(f"ds_read_b128 {V(VF,4)}, v{vVa}")
        I(f"ds_read_b128 {V(VF+4,4)}, v{vVa} offset:1280")
        self.raw(f"""
            s_cmp_eq_u32 s{sTau}, 0
            s_cselect_b32 s{sF}, -1, 0
            s_cmp_eq_u32 s{sTau}, 8
            s_cselect_b32 s{sD}, -1, 0
        """)
        for r in range(16):
            I(f"v_and_b32 v{CM+r}, s{sF}, v{mF+r}")
            I(f"v_and_or_b32 v{CM+r}, v{mD+r}, s{sD}, v{CM+r}")
        I(f"v_mfma_f32_32x32x16_bf16 {V(S,16)}, {V(KF,4)}, {V(Q,4)}, {V(CM,16)}")
        P.drain()
        I(f"s_cmp_eq_u32 s{sPass}, 0")
        I("s_cbranch_scc0 Ls_p1")
        for r in range(0, 16, 2): I(f"v_max3_f32 v{vM}, v{vM}, v{S+r}, v{S+r+1}")
        I("s_branch Ls_next")
        P.label("Ls_p1")
        for r in range(16): I(f"v_sub_f32 v{S+r}, v{S+r}, v{vM}")
        for r in range(16): I(f"v_exp_f32 v{EB+r}, v{S+r}")
        for k in range(8): I(f"v_cvt_pk_bf16_f32 v{PB+k}, v{EB+2*k}, v{EB+2*k+1}")
        for hf in range(2):
            I(f"v_mfma_f32_32x32x16_bf16 {V(O,16)}, {V(VF+4*hf,4)}, {V(PB+4*hf,4)}, {V(O,16)}")
        P.label("Ls_next")
        P.drain()
        self.raw(f"""
            v_add_u32 v{vKa}, 2048, v{vKa}
            v_add_u32 v{vVa}, 2560, v{vVa}
            s_add_u32 s{sTau}, s{sTau}, 1
            s_cmp_le_u32 s{sTau}, 8
            s_cbranch_scc1 Ls_tile
            s_cmp_eq_u32 s{sPass}, 0
            s_cbranch_scc0 Ls_hdone
            v_mov_b32 v{vKa}, v{vM}
            v_permlane32_swap_b32 v{vKa}, v{vM}
            v_max_f32 v{vM}, v{vM}, v{vKa}
            s_mov_b32 s{sPass}, 1
            s_branch Ls_pass
        """)
        P.label("Ls_hdone")
        I(f"s_cmp_eq_u32 s{sHd}, 0")
        I("s_cbranch_scc0 Ls_done")
        for r in range(16): I(f"v_mov_b32 v{OB+r}, v{O+r}")
        for k in range(4): I(f"v_mov_b32 v{Q+k}, v{QF+4+k}")
        self.raw(f"""
            v_add_u32 v{vK0}, 1024, v{vK0}
            v_sub_u32 v{vV0}, v{vV0}, v{vVr[0]}
            v_add_u32 v{vV0}, v{vV0}, v{vVr[1]}
            s_mov_b32 s{sHd}, 1
            s_branch Ls_head
        """)
        P.label("Ls_done")
        for r in range(16): I(f"v_mov_b32 v{OB+16+r}, v{O+r}")
        P.drain()


HEADER = open(f"cdna_kernels/{NAME}.s.ref").read().split("; Override launch")[0]


def generate(cfg, verbose=False):
    gK = Gen("K", dict(cfg)); gK.build()
    gV = Gen("V", dict(cfg)); gV.build()
    gS = Gen("K", dict(cfg), slow_jobs=gK.fast_rec); gS.build()
    for g in (gK, gV, gS):
        if g.P.errors:
            print("\n".join(g.P.errors[:30])); raise SystemExit("generator errors")
    K, Vp, S = gK.P, gV.P, gS.P
    assert K.text(0, K.marks["A"]) == Vp.text(0, Vp.marks["A"])
    assert K.text(K.marks["B"]) == Vp.text(Vp.marks["B"])
    assert K.text(0, K.marks["C"]) == S.text(0, S.marks["C"])
    body = [K.text(0, K.marks["A"]),
            f"    s_bitcmp1_b32 s{sJ}, 0", "    s_cbranch_scc1 L_p1v",
            K.text(K.marks["A"], K.marks["B"]), "    s_branch L_p1e", "L_p1v:",
            Vp.text(Vp.marks["A"], Vp.marks["B"]), "L_p1e:",
            K.text(K.marks["B"]),
            S.text(S.marks["C"], S.marks["E"])]
    body += [x for (sl, x) in gK.ool] + [x for (sl, x) in gS.ool if sl]
    if verbose:
        for n, tt, pf, sl in K.log: print(f"{n:8s} t={tt:7.0f} pipe_free={pf:7.0f} stall={sl:6.0f}")
        from collections import Counter
        print(Counter(x.cls for x in K.out))
        print("nop states:", sum(x.ws for x in K.out if x.cls == "nop"))
    cfg["stamps"] = gK.cfg.get("stamps", {})
    return HEADER + f"""; @launch grid=(256,1,1) block=(256,1,1) lds=163840
.amdgcn_target "amdgcn-amd-amdhsa--gfx950"
.text
.globl {NAME}_kernel
.p2align 8
.type {NAME}_kernel,@function
{NAME}_kernel:
""" + "\n".join(body) + f"""
.section .rodata,"a"
.p2align 6
.amdhsa_kernel {NAME}_kernel
  .amdhsa_next_free_vgpr 512
  .amdhsa_next_free_sgpr 102
  .amdhsa_accum_offset 256
  .amdhsa_group_segment_fixed_size 0
  .amdhsa_kernarg_size 80
  .amdhsa_user_sgpr_count 2
  .amdhsa_user_sgpr_kernarg_segment_ptr 1
  .amdhsa_system_sgpr_workgroup_id_x 1
.end_amdhsa_kernel
"""


if __name__ == "__main__":
    import json
    cfg = {}
    out = f"cdna_kernels/{NAME}.s"
    for a in sys.argv[1:]:
        k, v = a.split("=", 1)
        if k == "out": out = v
        else: cfg[k] = json.loads(v)
    txt = generate(cfg, verbose=True)
    open(out, "w").write(txt)
    json.dump(cfg["stamps"], open(out + ".json", "w"))
    print("written", out, len(txt))
```
